```python
import torch

def _softmax(x, axis=-1):
    return torch.softmax(x, dim=axis)
def _gelu(x):
    return torch.nn.functional.gelu(x, approximate="tanh")
def _silu(x):
    return torch.nn.functional.silu(x)
def _sigmoid(x):
    return torch.sigmoid(x)
def _layernorm(x, axis=-1, eps=1e-5):
    m = x.mean(dim=axis, keepdim=True)
    v = x.var(dim=axis, keepdim=True, unbiased=False)
    return (x - m) / torch.sqrt(v + eps)
def _scatter_add(tgt, idx, src, axis=0):
    return tgt.clone().index_add_(axis, idx, src)
def _segment_sum(src, seg, n):
    out = torch.zeros((n,) + src.shape[1:], dtype=src.dtype)
    return out.index_add_(0, seg, src)
def _pad(x, pw):
    flat = tuple(v for pair in reversed(pw) for v in pair)
    return torch.nn.functional.pad(x, flat)

kernel_name = 'gated_mix__grouped_kv_mqa__mixer_token_mlp__prompt'

def setup_inputs():

    _w = (lambda a: (lambda t: t.to(torch.bfloat16) if t.is_floating_point() else t)(torch.as_tensor(a)))
    def _A_setup():
        B, S, D, H = 1, 2048, 1024, 32
        Dh = D // H
        return {
            "x": _w((lambda *s: torch.randn(*s, dtype=torch.bfloat16) * 0.05)(B, S, D)),
            "wq": _w((lambda *s: torch.randn(*s, dtype=torch.bfloat16) * 0.8)(D, H * Dh)),
            "wk": _w((lambda *s: torch.randn(*s, dtype=torch.bfloat16) * 0.8)(D, Dh)),
            "wv": _w((lambda *s: torch.randn(*s, dtype=torch.bfloat16) * 0.05)(D, Dh)),
            "wo": _w((lambda *s: torch.randn(*s, dtype=torch.bfloat16) * 0.05)(H * Dh, D)),
        }
    _A_in = _A_setup()

    def _B_setup():
        B, S, D, F = 1, 2048, 1024, 3584
        return {
            "x": _w((lambda *s: torch.randn(*s, dtype=torch.bfloat16) * 0.05)(B, S, D)),
            "w1": _w((lambda *s: torch.randn(*s, dtype=torch.bfloat16) * 0.4)(S, F) * (S ** -0.5)),
            "b1": _w((lambda *s: torch.randn(*s, dtype=torch.bfloat16) * 3.2)(F) * 0.02),
            "w2": _w((lambda *s: torch.randn(*s, dtype=torch.bfloat16) * 0.1)(F, S) * (F ** -0.5)),
            "b2": _w((lambda *s: torch.randn(*s, dtype=torch.bfloat16) * 0.4)(S) * 0.02),
        }
    _B_in = _B_setup()

    return {
        "A_x": _A_in["x"],
        "A_wq": _A_in["wq"],
        "A_wk": _A_in["wk"],
        "A_wv": _A_in["wv"],
        "A_wo": _A_in["wo"],
        "B_x": _B_in["x"],
        "B_w1": _B_in["w1"],
        "B_b1": _B_in["b1"],
        "B_w2": _B_in["w2"],
        "B_b2": _B_in["b2"],
        "gate_w": _w((lambda *s: torch.randn(*s, dtype=torch.bfloat16) * 0.05)(1024) * 16.0),
    }

def reference(A_x, A_wq, A_wk, A_wv, A_wo, B_x, B_w1, B_b1, B_w2, B_b2, gate_w):
    def _A_ref(x, wq, wk, wv, wo):
        B, S, D = x.shape
        H = 32
        Dh = D // H
        q = (lambda x, *d: x.permute(*d))((x @ wq).reshape(B, S, H, Dh), 0, 2, 1, 3)
        k = x @ wk
        v = x @ wv
        scores = torch.einsum("bhqd,bkd->bhqk", q, k) * (Dh ** -0.5)
        p = _softmax(scores, axis=-1)
        o = torch.einsum("bhqk,bkd->bhqd", p, v)
        return (lambda x, *d: x.permute(*d))(o, 0, 2, 1, 3).reshape(B, S, H * Dh) @ wo

    def _B_ref(x, w1, b1, w2, b2):
        B, S, D = x.shape
        h = _layernorm(x, axis=-1)
        u = torch.einsum("bsd,sf->bdf", h, w1) + b1
        u = _gelu(u)
        y = torch.einsum("bdf,fs->bds", u, w2) + b2
        return (lambda x, *d: x.permute(*d))(y, 0, 2, 1)

    x = A_x
    g = _sigmoid((x * gate_w).sum(-1, keepdims=True))
    a = _A_ref(x, A_wq, A_wk, A_wv, A_wo)
    b = _B_ref(x, B_w1, B_b1, B_w2, B_b2)
    return g * a + (1 - g) * b
```

```python
import re

class Asm:
    def __init__(self):
        self.lines = []
    def __call__(self, s):
        for ln in s.split("\n"):
            ln = ln.strip()
            if ln:
                self.lines.append("  " + ln)
    def label(self, name):
        self.lines.append(name + ":")
    def raw(self, s):
        self.lines.append(s)
    def comment(self, s):
        self.lines.append("  ; " + s)
    def nop(self, n):
        while n > 0:
            k = min(n, 16)
            self("s_nop %d" % (k - 1))
            n -= k
    def text(self):
        return "\n".join(self.lines) + "\n"

def vr(a, n=1):
    return "v%d" % a if n == 1 else "v[%d:%d]" % (a, a + n - 1)
def sr(a, n=1):
    return "s%d" % a if n == 1 else "s[%d:%d]" % (a, a + n - 1)

def f32hex(x):
    import struct
    return "0x%08x" % struct.unpack("<I", struct.pack("<f", x))[0]

KD = """.section .rodata,"a"
.p2align 6
.amdhsa_kernel {name}
  .amdhsa_next_free_vgpr {vgpr}
  .amdhsa_next_free_sgpr {sgpr}
  .amdhsa_accum_offset {accum}
  .amdhsa_group_segment_fixed_size 0
  .amdhsa_kernarg_size 112
  .amdhsa_user_sgpr_count 2
  .amdhsa_user_sgpr_kernarg_segment_ptr 1
  .amdhsa_system_sgpr_workgroup_id_x 1
.end_amdhsa_kernel
"""

def kernel_text(name, body, vgpr, sgpr=96, agpr=0):
    accum = (vgpr + 3) // 4 * 4
    tot = accum + agpr if agpr else vgpr
    s = ".text\n.globl %s\n.p2align 8\n.type %s,@function\n%s:\n" % (name, name, name)
    s += body
    s += KD.format(name=name, vgpr=tot, sgpr=sgpr, accum=accum)
    return s

_reg_re = re.compile(r"(?<![\w.])([vas])(?:(\d+)|\[(\d+):(\d+)\])(?![\w])")
TRANS = ("v_exp_", "v_log_", "v_rcp_", "v_rsq_", "v_sqrt_", "v_sin_", "v_cos_")

def _regs(op):
    out = []
    for m in _reg_re.finditer(op):
        k = m.group(1)
        if m.group(2) is not None:
            out.append((k, int(m.group(2))))
        else:
            out += [(k, i) for i in range(int(m.group(3)), int(m.group(4)) + 1)]
    if re.search(r"\bvcc\b", op): out.append(("s", "vcc"))
    if re.search(r"\bexec\b", op): out.append(("s", "exec"))
    if re.search(r"\bm0\b", op): out.append(("s", "m0"))
    return out

def _split_ops(rest):
    ops, depth, cur = [], 0, ""
    for ch in rest:
        if ch == "[": depth += 1
        if ch == "]": depth -= 1
        if ch == "," and depth == 0:
            ops.append(cur.strip()); cur = ""
        else:
            cur += ch
    if cur.strip(): ops.append(cur.strip())
    return ops

class Ins:
    pass

def parse(line):
    t = line.split(";")[0].strip()
    if not t or t.endswith(":") or t.startswith("."):
        return None
    parts = t.split(None, 1)
    I = Ins(); I.text = t; I.op = parts[0]
    ops = _split_ops(parts[1]) if len(parts) > 1 else []
    I.ops = ops
    op = I.op
    I.kind = "other"; I.wr = []; I.rd = []; I.states = 1
    I.srcC = []; I.srcAB = []
    if op == "s_nop":
        I.states = int(ops[0], 0) + 1
    elif op.startswith("v_mfma") or op.startswith("v_smfmac"):
        I.kind = "mfma"
        I.wr = _regs(ops[0])
        I.srcAB = _regs(ops[1]) + _regs(ops[2])
        if op.startswith("v_smfmac"):
            I.srcC = _regs(ops[0]); I.srcAB += _regs(ops[3].split()[0])
        else:
            I.srcC = _regs(ops[3].split()[0])
        I.rd = I.srcAB + I.srcC
        I.passes = 8 if "32x32" in op else 4
    elif op.startswith("v_"):
        I.kind = "valu"
        I.trans = op.startswith(TRANS)
        I.dpp = ("_dpp" in op) or ("quad_perm" in t) or ("row_" in t)
        I.permlane = op.startswith("v_permlane")
        I.sdwa_dst = "dst_sel:WORD" in t or "dst_sel:BYTE" in t
        if op.startswith("v_cmp"):
            I.wr = _regs(ops[0]); I.rd = sum((_regs(o) for o in ops[1:]), [])
            if op.startswith("v_cmpx"): I.wr.append(("s", "exec"))
        elif I.permlane:
            I.wr = _regs(ops[0]) + _regs(ops[1]); I.rd = list(I.wr)
        elif op.startswith(("v_add_co", "v_sub_co", "v_addc_co", "v_subb_co", "v_div_scale")):
            I.wr = _regs(ops[0]) + _regs(ops[1]); I.rd = sum((_regs(o) for o in ops[2:]), [])
        else:
            I.wr = _regs(ops[0]); I.rd = sum((_regs(o.split(" ")[0] if not o.startswith(("-", "abs", "|")) else o) for o in ops[1:]), [])
            if op.startswith(("v_fmac", "v_dot2c", "v_pk_fmac", "v_writelane")) or I.sdwa_dst or I.dpp:
                I.rd += I.wr
    elif op.startswith(("buffer_", "global_", "flat_")):
        I.kind = "vmem"
        lds = bool(re.search(r"\blds\b", t)) or "_lds_" in op
        I.lds = lds
        if "store" in op or ("atomic" in op):
            I.rd = sum((_regs(o) for o in ops), [])
            I.store = True
            I.data = _regs(ops[0]) if op.startswith("buffer_") else _regs(ops[1])
            I.wide = ("x3" in op or "x4" in op)
        elif op in ("buffer_wbl2", "buffer_inv"):
            pass
        elif lds:
            I.rd = sum((_regs(o) for o in ops), []) + [("s", "m0")]
        else:
            I.wr = _regs(ops[0]); I.rd = sum((_regs(o) for o in ops[1:]), [])
    elif op.startswith("ds_"):
        I.kind = "ds"
        if op.startswith(("ds_read", "ds_bpermute", "ds_permute", "ds_swizzle")) or "_rtn" in op:
            I.wr = _regs(ops[0]); I.rd = sum((_regs(o) for o in ops[1:]), [])
        else:
            I.rd = sum((_regs(o) for o in ops), [])
    elif op.startswith("s_"):
        I.kind = "salu"
        if op.startswith(("s_cmp", "s_cbranch", "s_branch", "s_waitcnt", "s_barrier", "s_endpgm", "s_setprio", "s_sleep")):
            I.rd = sum((_regs(o) for o in ops), [])
        else:
            I.wr = _regs(ops[0]) if ops else []
            I.rd = sum((_regs(o) for o in ops[1:]), [])
            if "saveexec" in op: I.wr.append(("s", "exec"))
    return I

def need(prod, cons):
    n = 0
    pw = set(prod.wr)
    if prod.kind == "valu":
        vw = {r for r in pw if r[0] in "va"}
        sw = {r for r in pw if r[0] == "s"}
        if cons.kind == "mfma" and vw & set(cons.rd): n = max(n, 2)
        if cons.kind == "mfma" and ("s", "exec") in sw: n = max(n, 4)
        if cons.kind == "valu":
            if cons.dpp and vw & set(cons.rd): n = max(n, 2)
            if cons.dpp and ("s", "exec") in sw: n = max(n, 5)
            if cons.permlane and vw & set(cons.rd): n = max(n, 2)
            if cons.permlane and ("s", "exec") in sw: n = max(n, 4)
            if cons.op.startswith(("v_readlane", "v_readfirstlane")) and vw & set(cons.rd): n = max(n, 1)
            if cons.op.startswith(("v_readlane", "v_readfirstlane", "v_writelane")) and ("s", "exec") in sw: n = max(n, 4)
            if prod.trans and not cons.trans and vw & set(cons.rd): n = max(n, 1)
            if prod.sdwa_dst and vw & set(cons.rd + cons.wr): n = max(n, 1)
            if sw & set(cons.rd):
                n = max(n, 4 if cons.op.startswith(("v_readlane", "v_writelane", "v_div_fmas")) else 2)
            if prod.op.startswith("v_dot") and vw & set(cons.rd + cons.wr) and cons.op != prod.op: n = max(n, 3)
        if cons.kind == "vmem" and sw & set(cons.rd): n = max(n, 5)
        if cons.kind == "salu" and sw & set(cons.rd): n = max(n, 1)
    if prod.kind == "mfma":
        p = prod.passes
        if cons.kind == "mfma":
            if pw & set(cons.srcAB): n = max(n, {4: 8, 8: 12}[p])
            if pw & set(cons.srcC):
                exact = (sorted(cons.srcC) == sorted(prod.wr)) and cons.passes == p
                if not exact: n = max(n, {4: 6, 8: 10}[p])
            elif pw & set(cons.wr):
                n = max(n, {4: 6, 8: 10}[p])
        elif cons.kind in ("valu", "vmem", "ds"):
            if pw & set(cons.rd + cons.wr): n = max(n, {4: 8, 8: 12}[p])
            if cons.kind == "valu" and set(prod.srcC) & set(cons.wr): n = max(n, {4: 3, 8: 7}[p])
    if prod.kind == "salu" and ("s", "m0") in pw and cons.kind == "vmem" and getattr(cons, "lds", False): n = max(n, 1)
    if prod.kind == "vmem" and getattr(prod, "store", False) and getattr(prod, "wide", False):
        if set(prod.data) & set(cons.wr): n = max(n, 2 if cons.kind == "valu" else 1)
    return n

def check_hazards(text, name=""):
    lines = text.split("\n")
    ins, labels = [], {}
    for ln in lines:
        t = ln.split(";")[0].strip()
        if t.endswith(":") and not t.startswith("."):
            labels[t[:-1]] = len(ins); continue
        I = parse(ln)
        if I is not None: ins.append(I)
    W = 24
    errs = []
    def check_seq(seq, start):
        for ci in range(start, len(seq)):
            c = seq[ci]; dist = 0
            for pi in range(ci - 1, max(-1, ci - W - 1), -1):
                p = seq[pi]
                n = need(p, c)
                if n > dist:
                    errs.append("%s: need %d have %d: [%s] -> [%s]" % (name, n, dist, p.text, c.text))
                dist += p.states
                if dist >= 20: break
    seg = []
    for i, I in enumerate(ins):
        seg.append(I)
        if I.op in ("s_branch", "s_endpgm"):
            check_seq(seg, 0); seg = []
    check_seq(seg, 0)
    for i, I in enumerate(ins):
        if I.op.startswith(("s_cbranch", "s_branch")):
            tgt = labels.get(I.ops[0])
            if tgt is None: continue
            pre = ins[max(0, i - W):i + 1]
            post = []
            for J in ins[tgt:tgt + W]:
                post.append(J)
                if J.op in ("s_branch", "s_endpgm"): break
            check_seq(pre + post, len(pre))
    return sorted(set(errs))
```

```python
from core import *

BK = 64
class Opnd:
    def __init__(self, kind, T, srd, stride, korder="N"):
        self.kind, self.T, self.srd, self.stride, self.korder = kind, T, srd, stride, korder
        self.region = 0
        self.bytes = T * BK * 2
        self.nld = self.bytes // 1024 // 4
    def kstep(self):
        return {"frag": 4096, "tr": BK * self.stride, "kc": BK * 2}[self.kind]

def emit_loader_setup(a, o, s_org, s_lw, vlane, vbase, tmp, stmp):
    t0, t1 = tmp, tmp + 1
    if o.kind == "frag":
        nk16 = o.stride
        if o.T == 128:
            a(f"s_add_u32 s{stmp}, s{s_org}, s{s_lw}")
            a(f"s_mul_i32 s{stmp}, s{stmp}, {nk16*1024}")
        else:
            a(f"s_lshr_b32 s{stmp}, s{s_lw}, 1")
            a(f"s_add_u32 s{stmp}, s{stmp}, s{s_org}")
            a(f"s_mul_i32 s{stmp}, s{stmp}, {nk16*1024}")
            a(f"s_and_b32 s{stmp+1}, s{s_lw}, 1")
            a(f"s_lshl_b32 s{stmp+1}, s{stmp+1}, 11")
            a(f"s_add_u32 s{stmp}, s{stmp}, s{stmp+1}")
        a(f"v_lshlrev_b32 v{vbase}, 4, v{vlane}")
        a(f"v_add_u32 v{vbase}, s{stmp}, v{vbase}")
        return [vbase] * o.nld
    if o.kind == "tr":
        lpr = o.T // 8
        rpi = 64 // lpr
        sh = lpr.bit_length() - 1
        a(f"v_lshrrev_b32 v{t0}, {sh}, v{vlane}")
        if o.T == 128:
            a(f"v_lshlrev_b32 v{t1}, 2, v{t0}")
        else:
            a(f"v_lshrrev_b32 v{t1}, 4, v{vlane}")
            a(f"v_and_b32 v{t1}, 1, v{t1}")
            a(f"v_lshlrev_b32 v{t1}, 2, v{t1}")
        a(f"v_and_b32 v{vbase}, {lpr-1}, v{vlane}")
        a(f"v_xor_b32 v{vbase}, v{vbase}, v{t1}")
        a(f"v_lshlrev_b32 v{vbase}, 4, v{vbase}")
        a(f"s_mov_b32 s{stmp}, {o.stride}")
        a(f"v_mul_lo_u32 v{t0}, v{t0}, s{stmp}")
        a(f"v_add_u32 v{vbase}, v{vbase}, v{t0}")
        a(f"s_mul_i32 s{stmp}, s{s_lw}, {16*o.stride}")
        a(f"s_lshl_b32 s{stmp+1}, s{s_org}, 1")
        a(f"s_add_u32 s{stmp}, s{stmp}, s{stmp+1}")
        a(f"v_add_u32 v{vbase}, s{stmp}, v{vbase}")
        for j in range(1, o.nld):
            a(f"v_add_u32 v{vbase+j}, {j*(rpi*o.stride-1024)}, v{vbase}")
        return [vbase + j for j in range(o.nld)]
    if o.kind == "kc":
        rows_per_wave = o.T // 4
        a(f"s_mul_i32 s{stmp}, s{s_lw}, {rows_per_wave}")
        a(f"s_add_u32 s{stmp}, s{stmp}, s{s_org}")
        a(f"s_mul_i32 s{stmp}, s{stmp}, {o.stride}")
        a(f"s_mov_b32 s{stmp+1}, {o.stride}")
        a(f"v_lshrrev_b32 v{t0}, 3, v{vlane}")
        a(f"v_mul_lo_u32 v{t0}, v{t0}, s{stmp+1}")
        a(f"v_add_u32 v{t0}, s{stmp}, v{t0}")
        for j in range(o.nld):
            a(f"v_lshrrev_b32 v{t1}, 4, v{vlane}")
            a(f"v_add_u32 v{t1}, {4*j}, v{t1}")
            a(f"v_and_b32 v{t1}, 7, v{t1}")
            a(f"v_and_b32 v{vbase+j}, 7, v{vlane}")
            a(f"v_xor_b32 v{vbase+j}, v{vbase+j}, v{t1}")
            a(f"v_lshlrev_b32 v{vbase+j}, 4, v{vbase+j}")
            a(f"v_add_u32 v{vbase+j}, v{vbase+j}, v{t0}")
            if j: a(f"v_add_u32 v{vbase+j}, {j*(8*o.stride-1024)}, v{vbase+j}")
        return [vbase + j for j in range(o.nld)]

def dma_instrs(o, voffs, s_soff, s_ldsw, slot_off):
    L = [f"s_add_u32 m0, s{s_ldsw}, {slot_off + o.region}", "s_nop 0"]
    for j in range(o.nld):
        off = f" offset:{j*1024}" if j else ""
        L.append(f"buffer_load_dwordx4 v{voffs[j]}, s[{o.srd}:{o.srd+3}], s{s_soff} offen{off} lds")
    return L

class Reader:
    def __init__(self, o, vbase, slot_bytes, ksplit):
        self.o, self.vbase, self.slot, self.ksplit = o, vbase, slot_bytes, ksplit
        nkb = 2 if ksplit else 4
        self.nreg = {"frag": 1, "tr": 2, "kc": nkb}[o.kind]
    def nvgpr(self): return 2 * self.nreg
    def setup(self, a, vlane, s_b0, s_kg, tmp, stmp):
        o = self.o; vb = self.vbase; t0, t1, t2 = tmp, tmp + 1, tmp + 2
        if o.kind == "frag":
            a(f"s_lshl_b32 s{stmp}, s{s_b0}, 12")
            if self.ksplit:
                a(f"s_lshl_b32 s{stmp+1}, s{s_kg}, 11")
                a(f"s_add_u32 s{stmp}, s{stmp}, s{stmp+1}")
            a(f"s_add_u32 s{stmp}, s{stmp}, {o.region}")
            a(f"v_lshlrev_b32 v{vb}, 4, v{vlane}")
            a(f"v_add_u32 v{vb}, s{stmp}, v{vb}")
        elif o.kind == "tr":
            rb = o.T * 2
            sh = rb.bit_length() - 1
            a(f"v_bfe_u32 v{t0}, v{vlane}, 2, 2")
            a(f"v_lshrrev_b32 v{t1}, 5, v{vlane}")
            a(f"v_lshlrev_b32 v{t1}, {2 if o.korder=='P' else 3}, v{t1}")
            a(f"v_add_u32 v{t1}, v{t1}, v{t0}")
            a(f"v_lshlrev_b32 v{t1}, {sh}, v{t1}")
            a(f"v_bfe_u32 v{t2}, v{vlane}, 4, 1")
            a(f"v_lshlrev_b32 v{t2}, 5, v{t2}")
            a(f"v_add_u32 v{t1}, v{t1}, v{t2}")
            a(f"v_and_b32 v{t2}, 3, v{vlane}")
            a(f"v_lshlrev_b32 v{t2}, 3, v{t2}")
            a(f"v_add_u32 v{t1}, v{t1}, v{t2}")
            if self.ksplit:
                a(f"s_mul_i32 s{stmp}, s{s_kg}, {32*rb}")
                a(f"s_add_u32 s{stmp}, s{stmp}, {o.region}")
            else:
                a(f"s_mov_b32 s{stmp}, {o.region}")
            a(f"v_add_u32 v{t1}, s{stmp}, v{t1}")
            if o.T == 64:
                a(f"v_lshrrev_b32 v{t0}, 1, v{t0}")
            for i in range(2):
                a(f"s_add_u32 s{stmp}, s{s_b0}, {i}")
                a(f"v_xor_b32 v{t2}, s{stmp}, v{t0}")
                a(f"v_lshlrev_b32 v{t2}, 6, v{t2}")
                a(f"v_add_u32 v{vb+i}, v{t1}, v{t2}")
        elif o.kind == "kc":
            a(f"v_and_b32 v{t0}, 31, v{vlane}")
            a(f"v_lshlrev_b32 v{t1}, 7, v{t0}")
            a(f"s_lshl_b32 s{stmp}, s{s_b0}, 12")
            a(f"s_add_u32 s{stmp}, s{stmp}, {o.region}")
            a(f"v_add_u32 v{t1}, s{stmp}, v{t1}")
            a(f"v_bfe_u32 v{t0}, v{vlane}, 1, 3")
            for i in range(self.nreg):
                a(f"v_lshrrev_b32 v{t2}, 5, v{vlane}")
                if self.ksplit:
                    a(f"s_lshl_b32 s{stmp}, s{s_kg}, 2")
                    a(f"s_add_u32 s{stmp}, s{stmp}, {2*i}")
                    a(f"v_add_u32 v{t2}, s{stmp}, v{t2}")
                else:
                    a(f"v_add_u32 v{t2}, {2*i}, v{t2}")
                a(f"v_xor_b32 v{t2}, v{t2}, v{t0}")
                a(f"v_lshlrev_b32 v{t2}, 4, v{t2}")
                a(f"v_add_u32 v{vb+i}, v{t1}, v{t2}")
        for i in range(self.nreg):
            a(f"v_add_u32 v{vb+self.nreg+i}, {2*self.slot}, v{vb+i}")
    def reads(self, slot, kb, blk, dst):
        o = self.o
        hi = self.nreg if slot >= 2 else 0
        so = (slot % 2) * self.slot
        if o.kind == "frag":
            return [(f"ds_read_b128 v[{dst}:{dst+3}], v{self.vbase+hi} offset:{so + blk*4096 + kb*1024}", dst)]
        if o.kind == "kc":
            return [(f"ds_read_b128 v[{dst}:{dst+3}], v{self.vbase+hi+kb} offset:{so + blk*4096}", dst)]
        rb = o.T * 2
        L = []
        for t in range(2):
            off = so + (16 * kb + (8 * t if o.korder == "P" else 4 * t)) * rb
            L.append((f"ds_read_b64_tr_b16 v[{dst+2*t}:{dst+2*t+1}], v{self.vbase+hi+blk} offset:{off}", dst))
        return L

class MfmaStream:
    def __init__(self, a, acc, sets):
        self.a, self.acc, self.sets = a, acc, sets
        self.out = []
        self.cur = 0
    def issue(self, rd):
        self.a(rd[0]); self.out.append(rd[1])
    def wait_for(self, tags):
        idx = -1
        for i, t in enumerate(self.out):
            if t in tags: idx = i
        if idx >= 0:
            n = len(self.out) - 1 - idx
            assert n <= 15
            self.a(f"s_waitcnt lgkmcnt({n})")
            self.out = self.out[idx + 1:]
    def wait_all(self):
        self.a("s_waitcnt lgkmcnt(0)"); self.out = []
    def frag_list(self, ra, rb, slot, kb, setidx):
        s = self.sets[setidx]
        return ra.reads(slot, kb, 0, s) + rb.reads(slot, kb, 0, s + 8) + rb.reads(slot, kb, 1, s + 12) + ra.reads(slot, kb, 1, s + 4)
    def substep(self, nxt, barrier=False, extra=None):
        a = self.a; s = self.sets[self.cur]
        if barrier:
            self.wait_all(); a("s_barrier")
        order = [(0, 0), (0, 1), (1, 0), (1, 1)]
        n = len(nxt)
        per = [(n + 2) // 3, (n + 1) // 3, n // 3, 0]
        extra = list(extra or [])
        k = 0
        for g, (mb, nb) in enumerate(order):
            A = s + 4 * mb; B = s + 8 + 4 * nb
            self.wait_for({A, B})
            c = self.acc + 16 * (2 * mb + nb)
            a(f"v_mfma_f32_32x32x16_bf16 v[{c}:{c+15}], v[{A}:{A+3}], v[{B}:{B+3}], v[{c}:{c+15}]")
            for _ in range(per[g]):
                self.issue(nxt[k]); k += 1
            if extra and g == 3:
                for e in extra: a(e)
        self.cur ^= 1

def mfma_phases(a, name, st, phases, ksplit, s_cnt, S=4):
    nsub = 2 if ksplit else 4
    ph0 = phases[0]
    for rd in st.frag_list(ph0["ra"], ph0["rb"], 0, 0, st.cur): st.issue(rd)
    for pi, ph in enumerate(phases):
        ra, rb, nst = ph["ra"], ph["rb"], ph["nst"]
        assert nst % S == 0
        def group(last):
            for slot in range(S):
                for sub in range(nsub):
                    if sub < nsub - 1:
                        st.substep(st.frag_list(ra, rb, slot, sub + 1, st.cur ^ 1))
                    else:
                        if last and slot == S - 1:
                            if pi + 1 < len(phases):
                                n = phases[pi + 1]
                                st.substep(st.frag_list(n["ra"], n["rb"], 0, 0, st.cur ^ 1), barrier=True)
                            else:
                                st.substep([])
                        else:
                            ex = None
                            if not last and slot == S - 1:
                                ex = [f"s_sub_u32 s{s_cnt}, s{s_cnt}, 1", f"s_cmp_lg_u32 s{s_cnt}, 0"]
                            st.substep(st.frag_list(ra, rb, (slot + 1) % S, 0, st.cur ^ 1), barrier=True, extra=ex)
        if nst // S > 1:
            a(f"s_mov_b32 s{s_cnt}, {nst//S - 1}")
            a.raw(".p2align 6")
            a.label(f"{name}_L{pi}")
            saved = list(st.out)
            group(False)
            assert st.out == saved, (st.out, saved)
            a(f"s_cbranch_scc1 {name}_L{pi}")
        group(True)
        if ph.get("after"): ph["after"]()

def loader_phases(a, name, phases, slot_bytes, s_cnt, S=4):
    stages = []
    for ph in phases: stages += [ph] * ph["nst"]
    n = len(stages)
    def issue(ph, slot):
        for key in ("A", "B"):
            o, voffs, s_soff, s_ldsw = ph[key]
            for ins in dma_instrs(o, voffs, s_soff, s_ldsw, slot * slot_bytes): a(ins)
        for key in ("A", "B"):
            o, voffs, s_soff, s_ldsw = ph[key]
            a(f"s_add_u32 s{s_soff}, s{s_soff}, {o.kstep()}")
    L = phases[0]["A"][0].nld + phases[0]["B"][0].nld
    for ph in phases: assert ph["A"][0].nld + ph["B"][0].nld == L
    for i in range(S): issue(stages[i], i)
    a(f"s_waitcnt vmcnt({(S-1)*L})")
    a("s_barrier")
    i = 0
    pi = 0
    pos = S
    start = 0
    for pi, ph in enumerate(phases):
        end = start + ph["nst"]
        cnt = end - max(pos, start)
        if cnt > 0:
            assert cnt % S == 0 and pos % S == 0
            if cnt // S > 1:
                a(f"s_mov_b32 s{s_cnt}, {cnt//S}")
                a.label(f"{name}_LD{pi}")
            for slot in range(S):
                a(f"s_waitcnt vmcnt({(S-2)*L})")
                a("s_barrier")
                issue(ph, slot)
            if cnt // S > 1:
                a(f"s_sub_u32 s{s_cnt}, s{s_cnt}, 1")
                a(f"s_cmp_lg_u32 s{s_cnt}, 0")
                a(f"s_cbranch_scc1 {name}_LD{pi}")
            pos = end
        start = end
    for r in range(S - 1):
        a(f"s_waitcnt vmcnt({(S-2-r)*L})")
        a("s_barrier")

def ksplit_exchange(a, acc, s_kg, s_wm, vlane, vtmp, stmp):
    a.nop(12)
    a("s_barrier")
    a(f"s_lshl_b32 s{stmp}, s{s_wm}, 1")
    a(f"s_add_u32 s{stmp+1}, s{stmp}, s{s_kg}")
    a(f"s_lshl_b32 s{stmp+1}, s{stmp+1}, 13")
    a(f"v_lshlrev_b32 v{vtmp}, 4, v{vlane}")
    a(f"v_add_u32 v{vtmp+1}, s{stmp+1}, v{vtmp}")
    a(f"s_xor_b32 s{stmp+1}, s{s_kg}, 1")
    a(f"s_add_u32 s{stmp+1}, s{stmp}, s{stmp+1}")
    a(f"s_lshl_b32 s{stmp+1}, s{stmp+1}, 13")
    a(f"v_add_u32 v{vtmp}, s{stmp+1}, v{vtmp}")
    a(f"s_cmp_eq_u32 s{s_kg}, 0")
    lab = f"KX{len(a.lines)}"
    a(f"s_cbranch_scc1 {lab}_0")
    for mb in range(2):
        for q in range(4):
            r = acc + 32 * mb + 4 * q
            a(f"ds_write_b128 v{vtmp+1}, v[{r}:{r+3}] offset:{mb*4096+q*1024}")
    a("s_waitcnt lgkmcnt(0)")
    for i in range(16): a(f"v_mov_b32 v{acc+i}, v{acc+16+i}")
    for i in range(16): a(f"v_mov_b32 v{acc+16+i}, v{acc+48+i}")
    a(f"s_branch {lab}_1")
    a.label(f"{lab}_0")
    for mb in range(2):
        for q in range(4):
            r = acc + 32 * mb + 16 + 4 * q
            a(f"ds_write_b128 v{vtmp+1}, v[{r}:{r+3}] offset:{mb*4096+q*1024}")
    a("s_waitcnt lgkmcnt(0)")
    for i in range(16): a(f"v_mov_b32 v{acc+16+i}, v{acc+32+i}")
    a.label(f"{lab}_1")
    a("s_barrier")
    for mb in range(2):
        for q in range(4):
            r = acc + 32 + 16 * mb + 4 * q
            a(f"ds_read_b128 v[{r}:{r+3}], v{vtmp} offset:{mb*4096+q*1024}")
    a("s_waitcnt lgkmcnt(0)")
    for i in range(0, 32, 2):
        a(f"v_pk_add_f32 v[{acc+i}:{acc+i+1}], v[{acc+i}:{acc+i+1}], v[{acc+32+i}:{acc+33+i}]")
```

```python
from core import *
from gemm import *
import math

S_, D_, F_, H_ = 2048, 1024, 3584, 32
KA = dict(x=0, wq=8, wk=16, wv=24, wo=32, bx=40, w1=48, b1=56, w2=64, b2=72, gw=80, out=88, dbg=96, ws=104)
WS_H  = 0
WS_G  = 4 << 20
WS_KV = (4 << 20) + (64 << 10)
WS_Q  = 8 << 20
WS_O  = 12 << 20
WS_U  = 16 << 20
LOG2E = 1.4426950408889634

def srd(a, d, sp, nbytes, off=0):
    if off:
        a(f"s_add_u32 s{d}, s{sp}, {off}")
        a(f"s_addc_u32 s{d+1}, s{sp+1}, 0")
    else:
        a(f"s_mov_b32 s{d}, s{sp}")
        a(f"s_mov_b32 s{d+1}, s{sp+1}")
    a(f"s_mov_b32 s{d+2}, {nbytes}")
    a(f"s_mov_b32 s{d+3}, 0x00020000")

def ldptr(a, d, name):
    a(f"s_load_dwordx2 s[{d}:{d+1}], s[0:1], {KA[name]}")

def wave_allreduce_add(a, regs, tmp):
    n = len(regs)
    def pad():
        if n < 3: a.nop(3 - n)
    for mod in ("quad_perm:[1,0,3,2]", "quad_perm:[2,3,0,1]", "row_half_mirror", "row_mirror"):
        pad()
        for r in regs: a(f"v_add_f32_dpp v{r}, v{r}, v{r} {mod} row_mask:0xf bank_mask:0xf")
    for op in ("v_permlane16_swap_b32", "v_permlane32_swap_b32"):
        for i, r in enumerate(regs): a(f"v_mov_b32 v{tmp+i}, v{r}")
        a.nop(2)
        for i, r in enumerate(regs): a(f"{op} v{r}, v{tmp+i}")
        for i, r in enumerate(regs): a(f"v_add_f32 v{r}, v{r}, v{tmp+i}")

def k_prep(name):
    a = Asm()
    a(f"s_cmp_ge_u32 s2, 256")
    a(f"s_cbranch_scc1 {name}_end")
    ldptr(a, 4, "x"); ldptr(a, 6, "gw"); ldptr(a, 8, "ws"); ldptr(a, 10, "wk"); ldptr(a, 12, "wv")
    a("v_lshrrev_b32 v1, 6, v0")
    a("v_and_b32 v2, 63, v0")
    a("v_readfirstlane_b32 s3, v1")
    a("s_lshr_b32 s40, s2, 1")
    a("s_and_b32 s41, s2, 1")
    a("s_waitcnt lgkmcnt(0)")
    srd(a, 16, 4, S_ * D_ * 2)
    srd(a, 20, 6, D_ * 2)
    srd(a, 24, 8, 8 << 20)
    a("s_cmp_eq_u32 s41, 0")
    a("s_cselect_b32 s28, s10, s12")
    a("s_cselect_b32 s29, s11, s13")
    a(f"s_mov_b32 s30, {D_*32*2}")
    a("s_mov_b32 s31, 0x00020000")
    a("v_lshlrev_b32 v3, 4, v2")
    a("s_lshl_b32 s42, s3, 14")
    for j in range(4):
        a(f"s_add_u32 m0, s42, {j*4096}")
        a(f"s_add_u32 s43, s42, {j*4096}")
        for i in range(4):
            off = f" offset:{i*1024}" if i else ""
            a(f"buffer_load_dwordx4 v3, s[28:31], s43 offen{off} lds")
    a("s_lshl_b32 s44, s40, 4")
    a("s_lshl_b32 s45, s41, 3")
    a("s_add_u32 s44, s44, s45")
    a("s_lshl_b32 s45, s3, 1")
    a("s_add_u32 s44, s44, s45")
    a("s_lshl_b32 s45, s44, 11")
    for r in range(2):
        a(f"buffer_load_dwordx4 v[{8+8*r}:{11+8*r}], v3, s[16:19], s45 offen offset:{2048*r}")
        a(f"buffer_load_dwordx4 v[{12+8*r}:{15+8*r}], v3, s[16:19], s45 offen offset:{2048*r+1024}")
    a("buffer_load_dwordx4 v[24:27], v3, s[20:23], 0 offen")
    a("buffer_load_dwordx4 v[28:31], v3, s[20:23], 0 offen offset:1024")
    a("v_and_b32 v4, 15, v2")
    a("v_lshlrev_b32 v4, 11, v4")
    a("v_lshrrev_b32 v5, 4, v2")
    a("v_lshlrev_b32 v6, 5, v5")
    a("v_add_u32 v4, v4, v6")
    a("s_lshl_b32 s46, s40, 15")
    a("s_lshl_b32 s47, s3, 9")
    a("s_add_u32 s46, s46, s47")
    for p in range(4):
        a(f"buffer_load_dwordx4 v[{96+8*p}:{99+8*p}], v4, s[16:19], s46 offen offset:{128*p}")
        a(f"buffer_load_dwordx4 v[{100+8*p}:{103+8*p}], v4, s[16:19], s46 offen offset:{128*p+16}")
    a("s_waitcnt vmcnt(8)")
    for r in range(2):
        for i in range(8):
            a(f"v_lshlrev_b32 v{32+16*r+2*i}, 16, v{8+8*r+i}")
            a(f"v_and_b32 v{33+16*r+2*i}, 0xffff0000, v{8+8*r+i}")
    for i in range(8):
        a(f"v_lshlrev_b32 v{64+2*i}, 16, v{24+i}")
        a(f"v_and_b32 v{65+2*i}, 0xffff0000, v{24+i}")
    for r in range(2):
        a(f"v_add_f32 v{80+r}, v{32+16*r}, v{33+16*r}")
        a(f"v_mul_f32 v{82+r}, v{32+16*r}, v64")
    for i in range(1, 16):
        for r in range(2):
            if i >= 2: a(f"v_add_f32 v{80+r}, v{80+r}, v{32+16*r+i}")
            a(f"v_fmac_f32 v{82+r}, v{32+16*r+i}, v{64+i}")
    wave_allreduce_add(a, [80, 81, 82, 83], 84)
    a(f"s_mov_b32 s48, {f32hex(1.0/D_)}")
    for r in range(2):
        a(f"v_mul_f32 v{80+r}, s48, v{80+r}")
    for i in range(16):
        for r in range(2):
            a(f"v_sub_f32 v{32+16*r+i}, v{32+16*r+i}, v{80+r}")
    for r in range(2):
        a(f"v_mul_f32 v{80+r}, v{32+16*r}, v{32+16*r}")
    for i in range(1, 16):
        for r in range(2):
            a(f"v_fmac_f32 v{80+r}, v{32+16*r+i}, v{32+16*r+i}")
    wave_allreduce_add(a, [80, 81], 84)
    a(f"v_mov_b32 v84, {f32hex(1e-5)}")
    for r in range(2):
        a(f"v_fma_f32 v{80+r}, v{80+r}, s48, v84")
    for r in range(2):
        a(f"v_rsq_f32 v{80+r}, v{80+r}")
    a(f"s_mov_b32 s49, {f32hex(-LOG2E)}")
    for r in range(2): a(f"v_mul_f32 v{82+r}, s49, v{82+r}")
    for r in range(2): a(f"v_exp_f32 v{82+r}, v{82+r}")
    a("s_nop 0")
    for r in range(2): a(f"v_add_f32 v{82+r}, 1.0, v{82+r}")
    for r in range(2): a(f"v_rcp_f32 v{82+r}, v{82+r}")
    for i in range(16):
        for r in range(2):
            a(f"v_mul_f32 v{32+16*r+i}, v{32+16*r+i}, v{80+r}")
    for r in range(2):
        for i in range(8):
            a(f"v_cvt_pk_bf16_f32 v{8+8*r+i}, v{32+16*r+2*i}, v{33+16*r+2*i}")
    for r in range(2):
        a(f"buffer_store_dwordx4 v[{8+8*r}:{11+8*r}], v3, s[24:27], s45 offen offset:{2048*r}")
        a(f"buffer_store_dwordx4 v[{12+8*r}:{15+8*r}], v3, s[24:27], s45 offen offset:{2048*r+1024}")
    a("s_lshl_b32 s50, s44, 2")
    a(f"s_add_u32 s50, s50, {WS_G}")
    a("v_mov_b32 v7, 0")
    a("s_mov_b64 exec, 1")
    a("buffer_store_dwordx2 v[82:83], v7, s[24:27], s50 offen")
    a("s_mov_b64 exec, -1")
    a("v_bfe_u32 v6, v2, 2, 2")
    a("v_lshlrev_b32 v7, 4, v5")
    a("v_add_u32 v6, v6, v7")
    a("v_lshlrev_b32 v6, 6, v6")
    a("v_and_b32 v7, 3, v2")
    a("v_lshlrev_b32 v7, 3, v7")
    a("v_add3_u32 v6, v6, v7, s42")
    for i in range(8): a(f"v_mov_b32 v{88+i}, 0")
    a("s_waitcnt vmcnt(5)")
    for p in range(4):
        for ab in range(2):
            for db in range(2):
                for t in range(2):
                    d = 32 + 8 * ((2 * p + ab) % 4) + 4 * db + 2 * t
                    a(f"ds_read_b64_tr_b16 v[{d}:{d+1}], v6 offset:{(64*p+8*ab+4*t)*64 + db*32}")
        if p % 2 == 1:
            a("s_waitcnt lgkmcnt(0)")
            a("s_cmp_eq_u32 s41, 0")
            a(f"s_cbranch_scc0 {name}_v{p}")
            for pp in (p - 1, p):
                for ab in range(2):
                    for db in range(2):
                        w = 32 + 8 * ((2 * pp + ab) % 4) + 4 * db; x = 96 + 8 * pp + 4 * ab
                        a(f"v_mfma_f32_16x16x32_bf16 v[{88+4*db}:{91+4*db}], v[{w}:{w+3}], v[{x}:{x+3}], v[{88+4*db}:{91+4*db}]")
            a(f"s_branch {name}_j{p}")
            a.label(f"{name}_v{p}")
            for pp in (p - 1, p):
                for ab in range(2):
                    for db in range(2):
                        w = 32 + 8 * ((2 * pp + ab) % 4) + 4 * db; x = 96 + 8 * pp + 4 * ab
                        a(f"v_mfma_f32_16x16x32_bf16 v[{88+4*db}:{91+4*db}], v[{x}:{x+3}], v[{w}:{w+3}], v[{88+4*db}:{91+4*db}]")
            a.label(f"{name}_j{p}")
    a.nop(8)
    a("s_lshl_b32 s51, s3, 11")
    a("s_add_u32 s51, s51, 65536")
    a("v_add_u32 v7, s51, v3")
    a("ds_write_b128 v7, v[88:91]")
    a("ds_write_b128 v7, v[92:95] offset:1024")
    a("s_waitcnt lgkmcnt(0)")
    a("s_barrier")
    a("s_cmp_ge_u32 s3, 2")
    a(f"s_cbranch_scc1 {name}_end")
    a("s_lshl_b32 s51, s3, 10")
    a("s_add_u32 s51, s51, 65536")
    a("v_add_u32 v7, s51, v3")
    for w in range(4):
        a(f"ds_read_b128 v[{32+4*w}:{35+4*w}], v7 offset:{w*2048}")
    a("v_and_b32 v8, 1, v5")
    a("v_lshlrev_b32 v8, 9, v8")
    a("v_lshrrev_b32 v9, 1, v5")
    a("v_lshlrev_b32 v9, 3, v9")
    a("v_and_b32 v10, 15, v2")
    a("v_lshlrev_b32 v10, 4, v10")
    a("v_add3_u32 v8, v8, v9, v10")
    a("s_lshr_b32 s52, s40, 1")
    a("s_lshl_b32 s52, s52, 12")
    a(f"s_add_u32 s52, s52, {WS_KV}")
    a("s_and_b32 s53, s40, 1")
    a("s_lshl_b32 s54, s3, 10")
    a("s_lshl_b32 s55, s53, 8")
    a("s_add_u32 s54, s54, s55")
    a("s_lshl_b32 s56, s53, 10")
    a("s_lshl_b32 s57, s3, 8")
    a("s_add_u32 s56, s56, s57")
    a("s_add_u32 s56, s56, 2048")
    a("s_cmp_eq_u32 s41, 0")
    a("s_cselect_b32 s54, s54, s56")
    a("s_add_u32 s52, s52, s54")
    a("s_waitcnt lgkmcnt(0)")
    for i in range(4):
        a(f"v_add_f32 v{32+i}, v{32+i}, v{36+i}")
        a(f"v_add_f32 v{40+i}, v{40+i}, v{44+i}")
    for i in range(4):
        a(f"v_add_f32 v{32+i}, v{32+i}, v{40+i}")
    a("v_cvt_pk_bf16_f32 v32, v32, v33")
    a("v_cvt_pk_bf16_f32 v33, v34, v35")
    a("buffer_store_dwordx2 v[32:33], v8, s[24:27], s52 offen")
    a.label(f"{name}_end")
    a("s_endpgm")
    return a.text(), dict(vgpr=128, grid=256, block=256, lds=65536 + 8192)

ACC = 64; SETS = [32, 48]
def gemm_common_ids(a):
    a("v_lshrrev_b32 v1, 6, v0")
    a("v_and_b32 v2, 63, v0")
    a("v_readfirstlane_b32 s3, v1")

def pack_store_frags(a, acc, nblk, vaddr, srd_, s_off, offs):
    for b in range(nblk):
        for hf in range(2):
            r = acc + 16 * b + 8 * hf
            for i in range(4):
                a(f"v_cvt_pk_bf16_f32 v{r+i}, v{r+2*i}, v{r+2*i+1}")
            so, io = offs[b][hf]
            a(f"buffer_store_dwordx4 v[{r}:{r+3}], v{vaddr}, s[{srd_}:{srd_+3}], s{so} offen" + (f" offset:{io}" if io else ""))

def k_qproj(name):
    a = Asm()
    a("s_cmp_ge_u32 s2, 256")
    a(f"s_cbranch_scc1 {name}_end")
    ldptr(a, 4, "wq"); ldptr(a, 6, "x"); ldptr(a, 8, "ws")
    gemm_common_ids(a)
    a("s_and_b32 s40, s2, 7"); a("s_lshr_b32 s41, s2, 3")
    a("s_and_b32 s42, s40, 1"); a("s_lshl_b32 s42, s42, 2"); a("s_and_b32 s43, s41, 3"); a("s_add_u32 s42, s42, s43")
    a("s_lshr_b32 s43, s40, 1"); a("s_lshl_b32 s43, s43, 3"); a("s_lshr_b32 s44, s41, 2"); a("s_add_u32 s43, s43, s44")
    a("s_lshl_b32 s44, s42, 7")
    a("s_lshl_b32 s45, s43, 6")
    a("s_waitcnt lgkmcnt(0)")
    srd(a, 16, 4, D_ * D_ * 2); srd(a, 20, 6, S_ * D_ * 2); srd(a, 24, 8, 4 << 20, WS_Q)
    A = Opnd("tr", 128, 16, D_ * 2, "N"); B = Opnd("kc", 64, 20, D_ * 2); B.region = A.bytes
    slot = A.bytes + B.bytes
    a("s_cmp_ge_u32 s3, 4")
    a(f"s_cbranch_scc1 {name}_ld")
    a("s_and_b32 s46, s3, 1")
    a("s_lshr_b32 s47, s3, 1")
    a("s_lshl_b32 s48, s46, 1")
    a("s_mov_b32 s49, 0")
    ra = Reader(A, 8, slot, True); rb = Reader(B, 16, slot, True)
    ra.setup(a, 2, 48, 47, 4, 60); rb.setup(a, 2, 49, 47, 4, 60)
    for i in range(64): a(f"v_mov_b32 v{ACC+i}, 0")
    a("s_barrier")
    st = MfmaStream(a, ACC, SETS)
    mfma_phases(a, name, st, [dict(ra=ra, rb=rb, nst=D_ // BK)], True, 50)
    ksplit_exchange(a, ACC, 47, 46, 2, 4, 60)
    c = LOG2E / math.sqrt(32.0)
    a(f"s_mov_b32 s52, {f32hex(c)}")
    for i in range(32): a(f"v_mul_f32 v{ACC+i}, s52, v{ACC+i}")
    a("s_lshl_b32 s53, s43, 1"); a("s_add_u32 s53, s53, s47"); a("s_lshl_b32 s53, s53, 6")
    a("s_lshl_b32 s54, s42, 3"); a("s_add_u32 s53, s53, s54")
    a("s_lshl_b32 s54, s46, 2"); a("s_add_u32 s53, s53, s54")
    a("s_lshl_b32 s53, s53, 10")
    a("v_lshlrev_b32 v4, 4, v2")
    pack_store_frags(a, ACC, 2, 4, 24, 53, [[(53, 0), (53, 1024)], [(53, 2048), (53, 3072)]])
    a("s_endpgm")
    a.label(f"{name}_ld")
    a("s_sub_u32 s46, s3, 4")
    va = emit_loader_setup(a, A, 44, 46, 2, 8, 4, 60)
    vb = emit_loader_setup(a, B, 45, 46, 2, 16, 4, 60)
    a("s_mov_b32 s52, 0"); a("s_mov_b32 s53, 0")
    a(f"s_mul_i32 s54, s46, {A.bytes//4}"); a(f"s_mul_i32 s55, s46, {B.bytes//4}")
    loader_phases(a, name, [dict(A=(A, va, 52, 54), B=(B, vb, 53, 55), nst=D_ // BK)], slot, 50)
    a.label(f"{name}_end")
    a("s_endpgm")
    return a.text(), dict(vgpr=128, grid=256, block=512, lds=4 * slot)

def gelu_block(a, r0, n, tmp, s_c0, s_c1):
    for i in range(0, n, 2):
        a(f"v_pk_mul_f32 v[{tmp+i}:{tmp+i+1}], v[{r0+i}:{r0+i+1}], v[{r0+i}:{r0+i+1}]")
    for i in range(0, n, 2):
        a(f"v_pk_fma_f32 v[{tmp+i}:{tmp+i+1}], v[{tmp+i}:{tmp+i+1}], s[{s_c1}:{s_c1+1}], v[{s_c0}:{s_c0+1}]")
    for i in range(0, n, 2):
        a(f"v_pk_mul_f32 v[{tmp+i}:{tmp+i+1}], v[{tmp+i}:{tmp+i+1}], v[{r0+i}:{r0+i+1}]")
    for i in range(n): a(f"v_exp_f32 v{tmp+i}, v{tmp+i}")
    for i in range(0, n, 2):
        a(f"v_pk_add_f32 v[{tmp+i}:{tmp+i+1}], v[{tmp+i}:{tmp+i+1}], v[{s_c0+2}:{s_c0+3}]")
    for i in range(n): a(f"v_rcp_f32 v{tmp+i}, v{tmp+i}")
    for i in range(0, n, 2):
        a(f"v_pk_mul_f32 v[{r0+i}:{r0+i+1}], v[{r0+i}:{r0+i+1}], v[{tmp+i}:{tmp+i+1}]")

def k_gemm1(name):
    a = Asm()
    a("s_cmp_ge_u32 s2, 224")
    a(f"s_cbranch_scc1 {name}_end")
    ldptr(a, 4, "w1"); ldptr(a, 6, "b1"); ldptr(a, 8, "ws")
    gemm_common_ids(a)
    a("s_and_b32 s40, s2, 7"); a("s_lshr_b32 s41, s2, 3")
    a("s_and_b32 s42, s40, 1"); a("s_lshl_b32 s42, s42, 2"); a("s_and_b32 s43, s41, 3"); a("s_add_u32 s42, s42, s43")
    a("s_lshr_b32 s43, s40, 1"); a("s_mul_i32 s43, s43, 7"); a("s_lshr_b32 s44, s41, 2"); a("s_add_u32 s43, s43, s44")
    a("s_lshl_b32 s44, s43, 7")
    a("s_lshl_b32 s45, s42, 7")
    a("s_waitcnt lgkmcnt(0)")
    srd(a, 16, 4, S_ * F_ * 2); srd(a, 20, 8, S_ * D_ * 2, WS_H); srd(a, 24, 8, D_ * F_ * 2, WS_U); srd(a, 28, 6, F_ * 2)
    A = Opnd("tr", 128, 16, F_ * 2, "N"); B = Opnd("tr", 128, 20, D_ * 2, "N"); B.region = A.bytes
    slot = A.bytes + B.bytes
    a("s_cmp_ge_u32 s3, 4")
    a(f"s_cbranch_scc1 {name}_ld")
    a("s_and_b32 s46, s3, 1")
    a("s_lshr_b32 s47, s3, 1")
    a("s_lshl_b32 s48, s46, 1"); a("s_lshl_b32 s49, s47, 1")
    a("v_lshrrev_b32 v4, 5, v2"); a("v_lshlrev_b32 v4, 3, v4")
    a("s_lshl_b32 s52, s46, 6"); a("s_add_u32 s52, s52, s44"); a("s_lshl_b32 s52, s52, 1")
    for mb in range(2):
        for q in range(4):
            a(f"buffer_load_dwordx2 v[{32+8*mb+2*q}:{33+8*mb+2*q}], v4, s[28:31], s52 offen offset:{mb*64+q*16}")
    ra = Reader(A, 8, slot, False); rb = Reader(B, 16, slot, False)
    ra.setup(a, 2, 48, None, 4, 60); rb.setup(a, 2, 49, None, 4, 60)
    a("s_waitcnt vmcnt(0)")
    for mb in range(2):
        for i in range(8):
            for nb in range(2):
                c = ACC + 16 * (2 * mb + nb) + 2 * i
                a(f"v_lshlrev_b32 v{c}, 16, v{32+8*mb+i}")
                a(f"v_and_b32 v{c+1}, 0xffff0000, v{32+8*mb+i}")
    a("s_barrier")
    st = MfmaStream(a, ACC, SETS)
    mfma_phases(a, name, st, [dict(ra=ra, rb=rb, nst=S_ // BK)], False, 50)
    c0 = -2.0 * math.sqrt(2.0 / math.pi) * LOG2E
    a(f"v_mov_b32 v4, {f32hex(c0)}"); a(f"v_mov_b32 v5, {f32hex(c0)}"); a("v_mov_b32 v6, 1.0"); a("v_mov_b32 v7, 1.0")
    a(f"s_mov_b32 s54, {f32hex(c0*0.044715)}"); a(f"s_mov_b32 s55, {f32hex(c0*0.044715)}")
    a("s_lshl_b32 s56, s42, 2"); a("s_add_u32 s56, s56, s49"); a("s_mul_i32 s56, s56, 224")
    a("s_lshl_b32 s57, s43, 3"); a("s_add_u32 s56, s56, s57")
    a("s_lshl_b32 s57, s46, 2"); a("s_add_u32 s56, s56, s57")
    a("s_lshl_b32 s56, s56, 10")
    a(f"s_add_u32 s57, s56, {224*1024}")
    a("v_lshlrev_b32 v3, 4, v2")
    a.nop(4)
    for b in range(4):
        mb, nb = b // 2, b % 2
        gelu_block(a, ACC + 16 * b, 16, 32, 4, 54)
        so = 56 + nb
        pack_store_frags(a, ACC + 16 * b, 1, 3, 24, None, [[(so, mb * 2048), (so, mb * 2048 + 1024)]])
    a("s_endpgm")
    a.label(f"{name}_ld")
    a("s_sub_u32 s46, s3, 4")
    va = emit_loader_setup(a, A, 44, 46, 2, 8, 4, 60)
    vb = emit_loader_setup(a, B, 45, 46, 2, 16, 4, 60)
    a("s_mov_b32 s52, 0"); a("s_mov_b32 s53, 0")
    a(f"s_mul_i32 s54, s46, {A.bytes//4}"); a(f"s_mul_i32 s55, s46, {B.bytes//4}")
    loader_phases(a, name, [dict(A=(A, va, 52, 54), B=(B, vb, 53, 55), nst=S_ // BK)], slot, 50)
    a.label(f"{name}_end")
    a("s_endpgm")
    return a.text(), dict(vgpr=128, grid=224, block=512, lds=4 * slot)

def k_gemm2(name):
    a = Asm()
    a("s_cmp_ge_u32 s2, 256")
    a(f"s_cbranch_scc1 {name}_end")
    ldptr(a, 4, "w2"); ldptr(a, 6, "b2"); ldptr(a, 8, "ws"); ldptr(a, 10, "wo"); ldptr(a, 12, "out")
    gemm_common_ids(a)
    a("s_and_b32 s40, s2, 7"); a("s_lshr_b32 s41, s2, 3")
    a("s_and_b32 s42, s40, 1"); a("s_lshl_b32 s42, s42, 2"); a("s_and_b32 s43, s41, 3"); a("s_add_u32 s42, s42, s43")
    a("s_lshr_b32 s43, s40, 1"); a("s_lshl_b32 s43, s43, 3"); a("s_lshr_b32 s44, s41, 2"); a("s_add_u32 s43, s43, s44")
    a("s_lshl_b32 s44, s42, 7")
    a("s_lshl_b32 s45, s43, 6")
    a("s_lshl_b32 s70, s42, 2")
    a("s_lshl_b32 s71, s43, 1")
    a("s_waitcnt lgkmcnt(0)")
    srd(a, 16, 8, D_ * F_ * 2, WS_U); srd(a, 20, 4, F_ * S_ * 2); srd(a, 24, 10, D_ * D_ * 2); srd(a, 28, 8, 4 << 20, WS_O)
    srd(a, 32, 12, S_ * D_ * 2); srd(a, 36, 6, S_ * 2); srd(a, 64, 8, S_ * 4, WS_G)
    A1 = Opnd("frag", 128, 16, F_ // 16); B1 = Opnd("tr", 64, 20, S_ * 2, "P"); B1.region = A1.bytes
    A2 = Opnd("tr", 128, 24, D_ * 2, "P"); B2 = Opnd("frag", 64, 28, D_ // 16); B2.region = A2.bytes
    slot = A1.bytes + B1.bytes
    a("s_cmp_ge_u32 s3, 4")
    a(f"s_cbranch_scc1 {name}_ld")
    a("s_and_b32 s46, s3, 1")
    a("s_lshr_b32 s47, s3, 1")
    a("s_lshl_b32 s48, s46, 1"); a("s_mov_b32 s49, 0")
    a("v_and_b32 v4, 31, v2"); a("v_add_u32 v4, s45, v4")
    a("v_lshlrev_b32 v5, 1, v4"); a("v_lshlrev_b32 v6, 2, v4")
    a("buffer_load_ushort v28, v5, s[36:39], 0 offen")
    a("buffer_load_ushort v29, v5, s[36:39], 0 offen offset:64")
    a("buffer_load_dword v30, v6, s[64:67], 0 offen")
    a("buffer_load_dword v31, v6, s[64:67], 0 offen offset:128")
    ra1 = Reader(A1, 8, slot, True); rb1 = Reader(B1, 10, slot, True)
    ra2 = Reader(A2, 14, slot, True); rb2 = Reader(B2, 18, slot, True)
    for r, b0 in ((ra1, 48), (rb1, 49), (ra2, 48), (rb2, 49)): r.setup(a, 2, b0, 47, 4, 60)
    a("s_waitcnt vmcnt(0)")
    a("v_lshlrev_b32 v28, 16, v28"); a("v_lshlrev_b32 v29, 16, v29")
    a("v_sub_f32 v30, 1.0, v30"); a("v_sub_f32 v31, 1.0, v31")
    a("s_cmp_eq_u32 s47, 0")
    a("s_cselect_b32 s52, 1.0, 0")
    a("v_mul_f32 v28, s52, v28"); a("v_mul_f32 v29, s52, v29")
    for b in range(4):
        for i in range(16): a(f"v_mov_b32 v{ACC+16*b+i}, v{28+b%2}")
    a("s_barrier")
    st = MfmaStream(a, ACC, SETS)
    def mid():
        a.nop(12)
        for b in range(4):
            for i in range(16): a(f"v_mul_f32 v{ACC+16*b+i}, v{30+b%2}, v{ACC+16*b+i}")
        a.nop(2)
    mfma_phases(a, name, st, [dict(ra=ra1, rb=rb1, nst=F_ // BK, after=mid), dict(ra=ra2, rb=rb2, nst=D_ // BK)], True, 50)
    ksplit_exchange(a, ACC, 47, 46, 2, 4, 60)
    for mb in range(2):
        for i in range(8):
            r = ACC + 16 * mb
            a(f"v_cvt_pk_bf16_f32 v{r+i}, v{r+2*i}, v{r+2*i+1}")
    a("v_and_b32 v4, 31, v2"); a("v_lshlrev_b32 v4, 11, v4")
    a("v_lshrrev_b32 v5, 5, v2"); a("v_lshlrev_b32 v5, 4, v5")
    a("v_add_u32 v4, v4, v5")
    a("s_lshl_b32 s52, s47, 5"); a("s_add_u32 s52, s52, s45"); a("s_lshl_b32 s52, s52, 11")
    a("s_lshl_b32 s53, s46, 6"); a("s_add_u32 s53, s53, s44"); a("s_lshl_b32 s53, s53, 1")
    a("s_add_u32 s52, s52, s53")
    for mb in range(2):
        for qp in range(2):
            r = ACC + 16 * mb + 4 * qp
            a(f"v_permlane32_swap_b32 v{r}, v{r+2}")
            a(f"v_permlane32_swap_b32 v{r+1}, v{r+3}")
            a(f"buffer_store_dwordx4 v[{r}:{r+3}], v4, s[32:35], s52 offen offset:{mb*64+qp*32}")
    a("s_endpgm")
    a.label(f"{name}_ld")
    a("s_sub_u32 s46, s3, 4")
    va1 = emit_loader_setup(a, A1, 70, 46, 2, 8, 4, 60)
    vb1 = emit_loader_setup(a, B1, 45, 46, 2, 12, 4, 60)
    va2 = emit_loader_setup(a, A2, 44, 46, 2, 16, 4, 60)
    vb2 = emit_loader_setup(a, B2, 71, 46, 2, 20, 4, 60)
    for s in (52, 53, 56, 57): a(f"s_mov_b32 s{s}, 0")
    a(f"s_mul_i32 s54, s46, {A1.bytes//4}"); a(f"s_mul_i32 s55, s46, {B1.bytes//4}")
    loader_phases(a, name, [dict(A=(A1, va1, 52, 54), B=(B1, vb1, 53, 55), nst=F_ // BK),
                            dict(A=(A2, va2, 56, 54), B=(B2, vb2, 57, 55), nst=D_ // BK)], slot, 50)
    a.label(f"{name}_end")
    a("s_endpgm")
    return a.text(), dict(vgpr=128, grid=256, block=512, lds=4 * slot)

def k_attn(name):
    a = Asm()
    Q, NEGM, SS, PP, O, L, SA, IDX = 8, 16, [32, 48], [64, 72], 80, 96, 100, 104
    K1, K2, V1, V2 = 108, 112, 116, 120
    VC, VN, VG = 4, 5, 6
    CH = 32768
    a("s_cmp_ge_u32 s2, 256")
    a(f"s_cbranch_scc1 {name}_end")
    ldptr(a, 8, "ws")
    gemm_common_ids(a)
    a("v_lshlrev_b32 v3, 4, v2")
    a("s_lshl_b32 s40, s2, 4"); a("s_lshl_b32 s41, s3, 1"); a("s_add_u32 s40, s40, s41"); a("s_lshl_b32 s40, s40, 10")
    a("s_lshr_b32 s42, s2, 2"); a("s_lshl_b32 s42, s42, 7")
    a("s_lshl_b32 s43, s3, 12")
    a("s_waitcnt lgkmcnt(0)")
    srd(a, 16, 8, 256 << 10, WS_KV); srd(a, 20, 8, 4 << 20, WS_Q); srd(a, 24, 8, 4 << 20, WS_O); srd(a, 28, 8, S_ * 4, WS_G)
    a(f"buffer_load_dwordx4 v[{Q}:{Q+3}], v3, s[20:23], s40 offen")
    a(f"buffer_load_dwordx4 v[{Q+4}:{Q+7}], v3, s[20:23], s40 offen offset:1024")
    a("v_and_b32 v7, 31, v2"); a("v_lshlrev_b32 v7, 2, v7")
    a(f"buffer_load_dword v{VG}, v7, s[28:31], s42 offen")
    def dma(s_goff, s_lds):
        a(f"s_mov_b32 m0, s{s_lds}")
        a("s_nop 0")
        for j in range(4):
            a(f"buffer_load_dwordx4 v3, s[16:19], s{s_goff} offen" + (f" offset:{j*1024}" if j else "") + " lds")
    a("s_mov_b32 s44, s43")
    a("s_mov_b32 s45, s43")
    for c in range(3):
        dma(44, 45)
        a(f"s_add_u32 s44, s44, {CH}"); a(f"s_add_u32 s45, s45, {CH}")
    a("v_bfe_u32 v7, v2, 2, 1")
    a("v_and_b32 v105, 3, v2")
    a("v_mov_b32 v106, 0x3f803f80")
    a("v_cmp_gt_u32 vcc, 2, v105")
    a.nop(2)
    a("v_cndmask_b32 v106, 0, v106, vcc")
    a("v_cmp_eq_u32 vcc, 0, v7")
    a.nop(2)
    a(f"v_cndmask_b32 v{SA}, 0, v106, vcc"); a(f"v_cndmask_b32 v{SA+1}, 0, v106, vcc")
    a(f"v_sub_u32 v{SA+2}, v106, v{SA}")
    a(f"v_sub_u32 v{SA+3}, v106, v{SA}")
    a(f"v_mov_b32 v{IDX}, 0x44444444"); a("v_mov_b32 v106, 0xeeeeeeee")
    a("v_cmp_eq_u32 vcc, 0, v105")
    a.nop(2)
    a(f"v_cndmask_b32 v{IDX}, v106, v{IDX}, vcc")
    def zero_state():
        for i in range(16): a(f"v_mov_b32 v{O+i}, 0")
        for i in range(4): a(f"v_mov_b32 v{L+i}, 0")
    zero_state()
    for i in range(8): a(f"v_mov_b32 v{PP[1]+i}, 0")
    for i in range(4): a(f"v_mov_b32 v{V2+i}, 0")
    a(f"v_mov_b32 v{VC}, v3"); a(f"v_add_u32 v{VN}, {CH}, v3")
    a("s_waitcnt vmcnt(8)")
    a("s_barrier")
    def rd(dst, base, off): a(f"ds_read_b128 v[{dst}:{dst+3}], v{base} offset:{off}")
    def qk(s, first, c):
        k = K1 if first else K2; q = Q if first else Q + 4
        cs = c if isinstance(c, str) else f"v[{c}:{c+15}]"
        a(f"v_mfma_f32_32x32x16_bf16 v[{s}:{s+15}], v[{k}:{k+3}], v[{q}:{q+3}], {cs}")
    def pv(p, first):
        v = V1 if first else V2; b = p if first else p + 4
        a(f"v_mfma_f32_32x32x16_bf16 v[{O}:{O+15}], v[{v}:{v+3}], v[{b}:{b+3}], v[{O}:{O+15}]")
    def sm(p): a(f"v_smfmac_f32_16x16x64_bf16 v[{L}:{L+3}], v[{SA}:{SA+3}], v[{p}:{p+7}], v{IDX}")
    def rowmax_to_negm(src, nreg_first):
        pass
    def set_negm(m):
        a(f"v_mov_b32 v7, v{m}")
        a.nop(2)
        a(f"v_permlane32_swap_b32 v{m}, v7")
        a(f"v_max_f32 v{m}, v{m}, v7")
        for i in range(16): a(f"v_sub_f32 v{NEGM+i}, 0, v{m}")
        a.nop(2)
    rd(K1, VC, 0); rd(K2, VC, 1024)
    a("s_waitcnt lgkmcnt(0)")
    qk(SS[0], True, "0"); qk(SS[0], False, SS[0])
    a.nop(12)
    s0 = SS[0]
    a(f"v_max3_f32 v105, v{s0}, v{s0+1}, v{s0+2}")
    for i in range(3, 15, 2): a(f"v_max3_f32 v105, v105, v{s0+i}, v{s0+i+1}")
    a(f"v_max_f32 v105, v105, v{s0+15}")
    set_negm(105)
    qk(SS[0], True, NEGM); qk(SS[0], False, SS[0])
    rd(K1, VC, 4096); rd(K2, VC, 4096 + 1024); rd(V1, VC, 2048)
    a("s_mov_b32 s46, 8")
    a("s_waitcnt lgkmcnt(0)")
    a.nop(10)
    a.raw(".p2align 6")
    a.label(f"{name}_loop")
    for i in range(8):
        s = SS[i % 2]; sn = SS[(i + 1) % 2]; p = PP[i % 2]; pp = PP[(i + 1) % 2]
        def e(j): a(f"v_exp_f32 v{s+j}, v{s+j}")
        def c(j): a(f"v_cvt_pk_bf16_f32 v{p+j}, v{s+2*j}, v{s+2*j+1}")
        def at(t): return (VC, t * 4096) if t < 8 else (VN, (t - 8) * 4096)
        if i == 6:
            a("s_waitcnt vmcnt(4)")
            a("s_barrier")
        a("s_waitcnt lgkmcnt(1)")
        qk(sn, True, NEGM)
        b, o = at(i + 2); rd(K1, b, o)
        if i == 6:
            a("s_and_b32 s45, s45, 0x1ffff")
            dma(44, 45)
            a(f"s_add_u32 s44, s44, {CH}"); a(f"s_add_u32 s45, s45, {CH}")
        e(0); e(1); e(2); e(3)
        qk(sn, False, sn)
        rd(K2, b, o + 1024)
        e(4); e(5); e(6); c(0); c(1)
        pv(pp, False)
        rd(V2, VC, i * 4096 + 3072)
        e(7); c(2); c(3); e(8); e(9)
        a("s_waitcnt lgkmcnt(3)")
        pv(p, True)
        b, o = at(i + 1); rd(V1, b, o + 2048)
        e(10); e(11); e(12); c(4); c(5)
        sm(pp)
        if i == 7:
            a(f"v_mov_b32 v{VC}, v{VN}")
            a(f"v_add_u32 v{VN}, {CH}, v{VN}")
            a(f"v_and_b32 v{VN}, 0x1ffff, v{VN}")
            a("s_sub_u32 s46, s46, 1")
            a("s_cmp_lg_u32 s46, 0")
        e(13); e(14); e(15); c(6); c(7)
    a(f"s_cbranch_scc1 {name}_loop")
    a("s_waitcnt lgkmcnt(0)")
    a("s_nop 0")
    pv(PP[1], False); sm(PP[1])
    a.nop(12)
    a(f"v_add_f32 v7, v{L}, v{L+1}")
    a(f"v_max3_f32 v105, |v{O}|, |v{O+1}|, |v{O+2}|")
    for i in range(3, 15, 2): a(f"v_max3_f32 v105, v105, |v{O+i}|, |v{O+i+1}|")
    a(f"v_max_f32 v105, v105, |v{O+15}|")
    a(f"v_add_f32 v106, v{O}, v{O+1}")
    for i in range(2, 16): a(f"v_add_f32 v106, v106, v{O+i}")
    a(f"s_mov_b32 s48, {f32hex(2.0**64)}")
    a(f"s_mov_b32 s49, {f32hex(2.0**120)}")
    a("v_cmp_gt_f32 s[50:51], s48, v7")
    a("v_cmp_gt_f32 s[52:53], s49, v105")
    a("v_cmp_o_f32 vcc, v106, v106")
    a.nop(2)
    a("s_and_b64 s[50:51], s[50:51], s[52:53]")
    a("s_and_b64 s[50:51], s[50:51], vcc")
    a("s_cmp_eq_u64 s[50:51], -1")
    a(f"s_cbranch_scc0 {name}_slow")
    a.label(f"{name}_fin")
    a("v_rcp_f32 v7, v7")
    a("s_nop 0")
    a(f"v_mul_f32 v7, v7, v{VG}")
    for i in range(16): a(f"v_mul_f32 v{O+i}, v{O+i}, v7")
    pack_store_frags(a, O, 1, 3, 24, None, [[(40, 0), (40, 1024)]])
    a.label(f"{name}_end")
    a("s_endpgm")
    a.label(f"{name}_slow")
    a("s_waitcnt vmcnt(0)")
    a("v_mov_b32 v105, 0xff800000")
    a("s_mov_b32 s46, 0")
    a.label(f"{name}_s1")
    a(f"buffer_load_dwordx4 v[{K1}:{K1+3}], v3, s[16:19], s46 offen")
    a(f"buffer_load_dwordx4 v[{K2}:{K2+3}], v3, s[16:19], s46 offen offset:1024")
    a("s_waitcnt vmcnt(0)")
    qk(s0, True, "0"); qk(s0, False, s0)
    a.nop(12)
    for i in range(0, 16, 2): a(f"v_max3_f32 v105, v105, v{s0+i}, v{s0+i+1}")
    a("s_add_u32 s46, s46, 4096")
    a(f"s_cmp_lt_u32 s46, {256<<10}")
    a(f"s_cbranch_scc1 {name}_s1")
    set_negm(105)
    zero_state()
    a("s_mov_b32 s46, 0")
    a.label(f"{name}_s2")
    for r, off in ((K1, 0), (K2, 1024), (V1, 2048), (V2, 3072)):
        a(f"buffer_load_dwordx4 v[{r}:{r+3}], v3, s[16:19], s46 offen" + (f" offset:{off}" if off else ""))
    a("s_waitcnt vmcnt(0)")
    qk(s0, True, NEGM); qk(s0, False, s0)
    a.nop(12)
    for j in range(16): a(f"v_exp_f32 v{s0+j}, v{s0+j}")
    a("s_nop 0")
    for j in range(8): a(f"v_cvt_pk_bf16_f32 v{PP[0]+j}, v{s0+2*j}, v{s0+2*j+1}")
    a.nop(2)
    pv(PP[0], True); pv(PP[0], False); sm(PP[0])
    a("s_add_u32 s46, s46, 4096")
    a(f"s_cmp_lt_u32 s46, {256<<10}")
    a.nop(8)
    a(f"s_cbranch_scc1 {name}_s2")
    a.nop(12)
    a(f"v_add_f32 v7, v{L}, v{L+1}")
    a(f"s_branch {name}_fin")
    return a.text(), dict(vgpr=128, grid=256, block=512, lds=4 * CH)
```

```python
import sys
sys.path.insert(0, "gen")
from core import *
import kernels as K

HEAD = open("gated_mix__grouped_kv_mqa__mixer_token_mlp__prompt.s.ref").read().split("; Override launch")[0]

def build(klist, path):
    launches, texts = [], []
    for name, fn in klist:
        body, cfg = fn(name)
        errs = check_hazards(body, name)
        for e in errs: print("HAZARD", e)
        launches.append(f"; @launch kernel={name} grid=({cfg['grid']},1,1) block=({cfg['block']},1,1) lds={cfg['lds']}")
        texts.append(kernel_text(name, body, cfg["vgpr"], cfg.get("sgpr", 96), cfg.get("agpr", 0)))
    s = HEAD + "\n".join(launches) + "\n" + '.amdgcn_target "amdgcn-amd-amdhsa--gfx950"\n' + "\n".join(texts)
    open(path, "w").write(s)
    return s

if __name__ == "__main__":
    out = sys.argv[1] if len(sys.argv) > 1 else "gated_mix__grouped_kv_mqa__mixer_token_mlp__prompt.s"
    build([("prep_kernel", K.k_prep), ("qproj_kernel", K.k_qproj), ("attn_kernel", K.k_attn),
           ("gemm1_kernel", K.k_gemm1), ("gemm2_kernel", K.k_gemm2)], out)
```

```python
import sys
sys.path.insert(0, "gen")
from core import *
import kernels as K

HEAD = open("gated_mix__grouped_kv_mqa__mixer_token_mlp__prompt.s.ref").read().split("; Override launch")[0]

def build(klist, path):
    launches, texts = [], []
    for ki, (name, fn) in enumerate(klist):
        DIAG["kidx"] = ki
        body, cfg = fn(name)
        errs = check_hazards(body, name)
        for e in errs: print("HAZARD", e)
        launches.append(f"; @launch kernel={name} grid=({cfg['grid']},1,1) block=({cfg['block']},1,1) lds={cfg['lds']}")
        texts.append(kernel_text(name, body, cfg["vgpr"], cfg.get("sgpr", 96), cfg.get("agpr", 0)))
    s = HEAD + "\n".join(launches) + "\n" + '.amdgcn_target "amdgcn-amd-amdhsa--gfx950"\n' + "\n".join(texts)
    open(path, "w").write(s)
    return s

if __name__ == "__main__":
    if "diag" in sys.argv:
        DIAG["on"] = True; sys.argv.remove("diag")
    out = sys.argv[1] if len(sys.argv) > 1 else "gated_mix__grouped_kv_mqa__mixer_token_mlp__prompt.s"
    build([("prep_kernel", K.k_prep), ("qproj_kernel", K.k_qproj), ("attn_kernel", K.k_attn),
           ("gemm1_kernel", K.k_gemm1), ("gemm2_kernel", K.k_gemm2)], out)
```

```python
import re

class Asm:
    def __init__(self):
        self.lines = []
    def __call__(self, s):
        for ln in s.split("\n"):
            ln = ln.strip()
            if ln:
                self.lines.append("  " + ln)
    def label(self, name):
        self.lines.append(name + ":")
    def raw(self, s):
        self.lines.append(s)
    def comment(self, s):
        self.lines.append("  ; " + s)
    def nop(self, n):
        while n > 0:
            k = min(n, 16)
            self("s_nop %d" % (k - 1))
            n -= k
    def text(self):
        return "\n".join(self.lines) + "\n"

def vr(a, n=1):
    return "v%d" % a if n == 1 else "v[%d:%d]" % (a, a + n - 1)
def sr(a, n=1):
    return "s%d" % a if n == 1 else "s[%d:%d]" % (a, a + n - 1)

def f32hex(x):
    import struct
    return "0x%08x" % struct.unpack("<I", struct.pack("<f", x))[0]

KD = """.section .rodata,"a"
.p2align 6
.amdhsa_kernel {name}
  .amdhsa_next_free_vgpr {vgpr}
  .amdhsa_next_free_sgpr {sgpr}
  .amdhsa_accum_offset {accum}
  .amdhsa_group_segment_fixed_size 0
  .amdhsa_kernarg_size 112
  .amdhsa_user_sgpr_count 2
  .amdhsa_user_sgpr_kernarg_segment_ptr 1
  .amdhsa_system_sgpr_workgroup_id_x 1
.end_amdhsa_kernel
"""

def kernel_text(name, body, vgpr, sgpr=96, agpr=0):
    accum = (vgpr + 3) // 4 * 4
    tot = accum + agpr if agpr else vgpr
    s = ".text\n.globl %s\n.p2align 8\n.type %s,@function\n%s:\n" % (name, name, name)
    s += body
    s += KD.format(name=name, vgpr=tot, sgpr=sgpr, accum=accum)
    return s

_reg_re = re.compile(r"(?<![\w.])([vas])(?:(\d+)|\[(\d+):(\d+)\])(?![\w])")
TRANS = ("v_exp_", "v_log_", "v_rcp_", "v_rsq_", "v_sqrt_", "v_sin_", "v_cos_")

def _regs(op):
    out = []
    for m in _reg_re.finditer(op):
        k = m.group(1)
        if m.group(2) is not None:
            out.append((k, int(m.group(2))))
        else:
            out += [(k, i) for i in range(int(m.group(3)), int(m.group(4)) + 1)]
    if re.search(r"\bvcc\b", op): out.append(("s", "vcc"))
    if re.search(r"\bexec\b", op): out.append(("s", "exec"))
    if re.search(r"\bm0\b", op): out.append(("s", "m0"))
    return out

def _split_ops(rest):
    ops, depth, cur = [], 0, ""
    for ch in rest:
        if ch == "[": depth += 1
        if ch == "]": depth -= 1
        if ch == "," and depth == 0:
            ops.append(cur.strip()); cur = ""
        else:
            cur += ch
    if cur.strip(): ops.append(cur.strip())
    return ops

class Ins:
    pass

def parse(line):
    t = line.split(";")[0].strip()
    if not t or t.endswith(":") or t.startswith("."):
        return None
    parts = t.split(None, 1)
    I = Ins(); I.text = t; I.op = parts[0]
    ops = _split_ops(parts[1]) if len(parts) > 1 else []
    I.ops = ops
    op = I.op
    I.kind = "other"; I.wr = []; I.rd = []; I.states = 1
    I.srcC = []; I.srcAB = []
    if op == "s_nop":
        I.states = int(ops[0], 0) + 1
    elif op.startswith("v_mfma") or op.startswith("v_smfmac"):
        I.kind = "mfma"
        I.wr = _regs(ops[0])
        I.srcAB = _regs(ops[1]) + _regs(ops[2])
        if op.startswith("v_smfmac"):
            I.srcC = _regs(ops[0]); I.srcAB += _regs(ops[3].split()[0])
        else:
            I.srcC = _regs(ops[3].split()[0])
        I.rd = I.srcAB + I.srcC
        I.passes = 8 if "32x32" in op else 4
    elif op.startswith("v_"):
        I.kind = "valu"
        I.trans = op.startswith(TRANS)
        I.dpp = ("_dpp" in op) or ("quad_perm" in t) or ("row_" in t)
        I.permlane = op.startswith("v_permlane")
        I.sdwa_dst = "dst_sel:WORD" in t or "dst_sel:BYTE" in t
        if op.startswith("v_cmp"):
            I.wr = _regs(ops[0]); I.rd = sum((_regs(o) for o in ops[1:]), [])
            if op.startswith("v_cmpx"): I.wr.append(("s", "exec"))
        elif I.permlane:
            I.wr = _regs(ops[0]) + _regs(ops[1]); I.rd = list(I.wr)
        elif op.startswith(("v_add_co", "v_sub_co", "v_addc_co", "v_subb_co", "v_div_scale")):
            I.wr = _regs(ops[0]) + _regs(ops[1]); I.rd = sum((_regs(o) for o in ops[2:]), [])
        else:
            I.wr = _regs(ops[0]); I.rd = sum((_regs(o.split(" ")[0] if not o.startswith(("-", "abs", "|")) else o) for o in ops[1:]), [])
            if op.startswith(("v_fmac", "v_dot2c", "v_pk_fmac", "v_writelane")) or I.sdwa_dst or I.dpp:
                I.rd += I.wr
    elif op.startswith(("buffer_", "global_", "flat_")):
        I.kind = "vmem"
        lds = bool(re.search(r"\blds\b", t)) or "_lds_" in op
        I.lds = lds
        if "store" in op or ("atomic" in op):
            I.rd = sum((_regs(o) for o in ops), [])
            I.store = True
            I.data = _regs(ops[0]) if op.startswith("buffer_") else _regs(ops[1])
            I.wide = ("x3" in op or "x4" in op)
        elif op in ("buffer_wbl2", "buffer_inv"):
            pass
        elif lds:
            I.rd = sum((_regs(o) for o in ops), []) + [("s", "m0")]
        else:
            I.wr = _regs(ops[0]); I.rd = sum((_regs(o) for o in ops[1:]), [])
    elif op.startswith("ds_"):
        I.kind = "ds"
        if op.startswith(("ds_read", "ds_bpermute", "ds_permute", "ds_swizzle")) or "_rtn" in op:
            I.wr = _regs(ops[0]); I.rd = sum((_regs(o) for o in ops[1:]), [])
        else:
            I.rd = sum((_regs(o) for o in ops), [])
    elif op.startswith("s_"):
        I.kind = "salu"
        if op.startswith(("s_cmp", "s_cbranch", "s_branch", "s_waitcnt", "s_barrier", "s_endpgm", "s_setprio", "s_sleep")):
            I.rd = sum((_regs(o) for o in ops), [])
        else:
            I.wr = _regs(ops[0]) if ops else []
            I.rd = sum((_regs(o) for o in ops[1:]), [])
            if "saveexec" in op: I.wr.append(("s", "exec"))
    return I

def need(prod, cons):
    n = 0
    pw = set(prod.wr)
    if prod.kind == "valu":
        vw = {r for r in pw if r[0] in "va"}
        sw = {r for r in pw if r[0] == "s"}
        if cons.kind == "mfma" and vw & set(cons.rd): n = max(n, 2)
        if cons.kind == "mfma" and ("s", "exec") in sw: n = max(n, 4)
        if cons.kind == "valu":
            if cons.dpp and vw & set(cons.rd): n = max(n, 2)
            if cons.dpp and ("s", "exec") in sw: n = max(n, 5)
            if cons.permlane and vw & set(cons.rd): n = max(n, 2)
            if cons.permlane and ("s", "exec") in sw: n = max(n, 4)
            if cons.op.startswith(("v_readlane", "v_readfirstlane")) and vw & set(cons.rd): n = max(n, 1)
            if cons.op.startswith(("v_readlane", "v_readfirstlane", "v_writelane")) and ("s", "exec") in sw: n = max(n, 4)
            if prod.trans and not cons.trans and vw & set(cons.rd): n = max(n, 1)
            if prod.sdwa_dst and vw & set(cons.rd + cons.wr): n = max(n, 1)
            if sw & set(cons.rd):
                n = max(n, 4 if cons.op.startswith(("v_readlane", "v_writelane", "v_div_fmas")) else 2)
            if prod.op.startswith("v_dot") and vw & set(cons.rd + cons.wr) and cons.op != prod.op: n = max(n, 3)
        if cons.kind == "vmem" and sw & set(cons.rd): n = max(n, 5)
        if cons.kind == "salu" and sw & set(cons.rd): n = max(n, 1)
    if prod.kind == "mfma":
        p = prod.passes
        if cons.kind == "mfma":
            if pw & set(cons.srcAB): n = max(n, {4: 8, 8: 12}[p])
            if pw & set(cons.srcC):
                exact = (sorted(cons.srcC) == sorted(prod.wr)) and cons.passes == p
                if not exact: n = max(n, {4: 6, 8: 10}[p])
            elif pw & set(cons.wr):
                n = max(n, {4: 6, 8: 10}[p])
        elif cons.kind in ("valu", "vmem", "ds"):
            if pw & set(cons.rd + cons.wr): n = max(n, {4: 8, 8: 12}[p])
            if cons.kind == "valu" and set(prod.srcC) & set(cons.wr): n = max(n, {4: 3, 8: 7}[p])
    if prod.kind == "salu" and ("s", "m0") in pw and cons.kind == "vmem" and getattr(cons, "lds", False): n = max(n, 1)
    if prod.kind == "vmem" and getattr(prod, "store", False) and getattr(prod, "wide", False):
        if set(prod.data) & set(cons.wr): n = max(n, 2 if cons.kind == "valu" else 1)
    return n

def check_hazards(text, name=""):
    lines = text.split("\n")
    ins, labels = [], {}
    for ln in lines:
        t = ln.split(";")[0].strip()
        if t.endswith(":") and not t.startswith("."):
            labels[t[:-1]] = len(ins); continue
        I = parse(ln)
        if I is not None: ins.append(I)
    W = 24
    errs = []
    def check_seq(seq, start):
        for ci in range(start, len(seq)):
            c = seq[ci]; dist = 0
            for pi in range(ci - 1, max(-1, ci - W - 1), -1):
                p = seq[pi]
                n = need(p, c)
                if n > dist:
                    errs.append("%s: need %d have %d: [%s] -> [%s]" % (name, n, dist, p.text, c.text))
                dist += p.states
                if dist >= 20: break
    seg = []
    for i, I in enumerate(ins):
        seg.append(I)
        if I.op in ("s_branch", "s_endpgm"):
            check_seq(seg, 0); seg = []
    check_seq(seg, 0)
    for i, I in enumerate(ins):
        if I.op.startswith(("s_cbranch", "s_branch")):
            tgt = labels.get(I.ops[0])
            if tgt is None: continue
            pre = ins[max(0, i - W):i + 1]
            post = []
            for J in ins[tgt:tgt + W]:
                post.append(J)
                if J.op in ("s_branch", "s_endpgm"): break
            check_seq(pre + post, len(pre))
    return sorted(set(errs))


DIAG = {"on": False, "kidx": 0}
WS_DIAG = 64 << 20
def stamp(a, i):
    if DIAG["on"]:
        a(f"s_memtime s[{72+2*i}:{73+2*i}]")
def diag_start(a):
    if DIAG["on"]:
        for i in range(8): a(f"s_mov_b32 s{72+2*i}, 0")
        a("s_memrealtime s[88:89]")
        a("s_memtime s[72:73]")
def diag_end(a, s_wave=3):
    if not DIAG["on"]: return
    a("s_waitcnt vmcnt(0)")
    a("s_memtime s[86:87]")
    a("s_memrealtime s[90:91]")
    a("s_load_dwordx2 s[92:93], s[0:1], 104")
    a("s_getreg_b32 s95, hwreg(HW_REG_HW_ID)")
    a("s_getreg_b32 s94, hwreg(HW_REG_XCC_ID)")
    a("s_waitcnt lgkmcnt(0)")
    a(f"s_add_u32 s92, s92, {WS_DIAG + DIAG['kidx'] * (512 << 10)}")
    a("s_addc_u32 s93, s93, 0")
    for i in range(8): a(f"v_mov_b32 v{8+i}, s{72+2*i}")
    a("v_mov_b32 v16, s88"); a("v_mov_b32 v17, s90"); a("v_mov_b32 v18, s95"); a("v_mov_b32 v19, s94")
    a("s_mov_b32 s94, 0x100000"); a("s_mov_b32 s95, 0x00020000")
    a(f"s_lshl_b32 s88, s2, 4"); a(f"s_add_u32 s88, s88, s{s_wave}"); a("s_lshl_b32 s88, s88, 6")
    a("v_mov_b32 v7, 0")
    a("s_mov_b64 exec, 1")
    for j in range(3):
        a(f"buffer_store_dwordx4 v[{8+4*j}:{11+4*j}], v7, s[92:95], s88 offen offset:{16*j}")
```

```python
from core import *
from gemm import *
import math

S_, D_, F_, H_ = 2048, 1024, 3584, 32
KA = dict(x=0, wq=8, wk=16, wv=24, wo=32, bx=40, w1=48, b1=56, w2=64, b2=72, gw=80, out=88, dbg=96, ws=104)
WS_H  = 0
WS_G  = 4 << 20
WS_KV = (4 << 20) + (64 << 10)
WS_Q  = 8 << 20
WS_O  = 12 << 20
WS_U  = 16 << 20
LOG2E = 1.4426950408889634

def srd(a, d, sp, nbytes, off=0):
    if off:
        a(f"s_add_u32 s{d}, s{sp}, {off}")
        a(f"s_addc_u32 s{d+1}, s{sp+1}, 0")
    else:
        a(f"s_mov_b32 s{d}, s{sp}")
        a(f"s_mov_b32 s{d+1}, s{sp+1}")
    a(f"s_mov_b32 s{d+2}, {nbytes}")
    a(f"s_mov_b32 s{d+3}, 0x00020000")

def ldptr(a, d, name):
    a(f"s_load_dwordx2 s[{d}:{d+1}], s[0:1], {KA[name]}")

def wave_allreduce_add(a, regs, tmp):
    n = len(regs)
    def pad():
        if n < 3: a.nop(3 - n)
    for mod in ("quad_perm:[1,0,3,2]", "quad_perm:[2,3,0,1]", "row_half_mirror", "row_mirror"):
        pad()
        for r in regs: a(f"v_add_f32_dpp v{r}, v{r}, v{r} {mod} row_mask:0xf bank_mask:0xf")
    for op in ("v_permlane16_swap_b32", "v_permlane32_swap_b32"):
        for i, r in enumerate(regs): a(f"v_mov_b32 v{tmp+i}, v{r}")
        a.nop(2)
        for i, r in enumerate(regs): a(f"{op} v{r}, v{tmp+i}")
        for i, r in enumerate(regs): a(f"v_add_f32 v{r}, v{r}, v{tmp+i}")

def k_prep(name):
    a = Asm()
    a(f"s_cmp_ge_u32 s2, 256")
    a(f"s_cbranch_scc1 {name}_end")
    diag_start(a)
    ldptr(a, 4, "x"); ldptr(a, 6, "gw"); ldptr(a, 8, "ws"); ldptr(a, 10, "wk"); ldptr(a, 12, "wv")
    a("v_lshrrev_b32 v1, 6, v0")
    a("v_and_b32 v2, 63, v0")
    a("v_readfirstlane_b32 s3, v1")
    a("s_lshr_b32 s40, s2, 1")
    a("s_and_b32 s41, s2, 1")
    a("s_waitcnt lgkmcnt(0)")
    srd(a, 16, 4, S_ * D_ * 2)
    srd(a, 20, 6, D_ * 2)
    srd(a, 24, 8, 8 << 20)
    a("s_cmp_eq_u32 s41, 0")
    a("s_cselect_b32 s28, s10, s12")
    a("s_cselect_b32 s29, s11, s13")
    a(f"s_mov_b32 s30, {D_*32*2}")
    a("s_mov_b32 s31, 0x00020000")
    a("v_lshlrev_b32 v3, 4, v2")
    a("s_lshl_b32 s42, s3, 14")
    for j in range(4):
        a(f"s_add_u32 m0, s42, {j*4096}")
        a(f"s_add_u32 s43, s42, {j*4096}")
        for i in range(4):
            off = f" offset:{i*1024}" if i else ""
            a(f"buffer_load_dwordx4 v3, s[28:31], s43 offen{off} lds")
    a("s_lshl_b32 s44, s40, 4")
    a("s_lshl_b32 s45, s41, 3")
    a("s_add_u32 s44, s44, s45")
    a("s_lshl_b32 s45, s3, 1")
    a("s_add_u32 s44, s44, s45")
    a("s_lshl_b32 s45, s44, 11")
    for r in range(2):
        a(f"buffer_load_dwordx4 v[{8+8*r}:{11+8*r}], v3, s[16:19], s45 offen offset:{2048*r}")
        a(f"buffer_load_dwordx4 v[{12+8*r}:{15+8*r}], v3, s[16:19], s45 offen offset:{2048*r+1024}")
    a("buffer_load_dwordx4 v[24:27], v3, s[20:23], 0 offen")
    a("buffer_load_dwordx4 v[28:31], v3, s[20:23], 0 offen offset:1024")
    a("v_and_b32 v4, 15, v2")
    a("v_lshlrev_b32 v4, 11, v4")
    a("v_lshrrev_b32 v5, 4, v2")
    a("v_lshlrev_b32 v6, 5, v5")
    a("v_add_u32 v4, v4, v6")
    a("s_lshl_b32 s46, s40, 15")
    a("s_lshl_b32 s47, s3, 9")
    a("s_add_u32 s46, s46, s47")
    for p in range(4):
        a(f"buffer_load_dwordx4 v[{96+8*p}:{99+8*p}], v4, s[16:19], s46 offen offset:{128*p}")
        a(f"buffer_load_dwordx4 v[{100+8*p}:{103+8*p}], v4, s[16:19], s46 offen offset:{128*p+16}")
    stamp(a, 1)
    a("s_waitcnt vmcnt(8)")
    stamp(a, 2)
    for r in range(2):
        for i in range(8):
            a(f"v_lshlrev_b32 v{32+16*r+2*i}, 16, v{8+8*r+i}")
            a(f"v_and_b32 v{33+16*r+2*i}, 0xffff0000, v{8+8*r+i}")
    for i in range(8):
        a(f"v_lshlrev_b32 v{64+2*i}, 16, v{24+i}")
        a(f"v_and_b32 v{65+2*i}, 0xffff0000, v{24+i}")
    for r in range(2):
        a(f"v_add_f32 v{80+r}, v{32+16*r}, v{33+16*r}")
        a(f"v_mul_f32 v{82+r}, v{32+16*r}, v64")
    for i in range(1, 16):
        for r in range(2):
            if i >= 2: a(f"v_add_f32 v{80+r}, v{80+r}, v{32+16*r+i}")
            a(f"v_fmac_f32 v{82+r}, v{32+16*r+i}, v{64+i}")
    wave_allreduce_add(a, [80, 81, 82, 83], 84)
    a(f"s_mov_b32 s48, {f32hex(1.0/D_)}")
    for r in range(2):
        a(f"v_mul_f32 v{80+r}, s48, v{80+r}")
    for i in range(16):
        for r in range(2):
            a(f"v_sub_f32 v{32+16*r+i}, v{32+16*r+i}, v{80+r}")
    for r in range(2):
        a(f"v_mul_f32 v{80+r}, v{32+16*r}, v{32+16*r}")
    for i in range(1, 16):
        for r in range(2):
            a(f"v_fmac_f32 v{80+r}, v{32+16*r+i}, v{32+16*r+i}")
    wave_allreduce_add(a, [80, 81], 84)
    a(f"v_mov_b32 v84, {f32hex(1e-5)}")
    for r in range(2):
        a(f"v_fma_f32 v{80+r}, v{80+r}, s48, v84")
    for r in range(2):
        a(f"v_rsq_f32 v{80+r}, v{80+r}")
    a(f"s_mov_b32 s49, {f32hex(-LOG2E)}")
    for r in range(2): a(f"v_mul_f32 v{82+r}, s49, v{82+r}")
    for r in range(2): a(f"v_exp_f32 v{82+r}, v{82+r}")
    a("s_nop 0")
    for r in range(2): a(f"v_add_f32 v{82+r}, 1.0, v{82+r}")
    for r in range(2): a(f"v_rcp_f32 v{82+r}, v{82+r}")
    for i in range(16):
        for r in range(2):
            a(f"v_mul_f32 v{32+16*r+i}, v{32+16*r+i}, v{80+r}")
    for r in range(2):
        for i in range(8):
            a(f"v_cvt_pk_bf16_f32 v{8+8*r+i}, v{32+16*r+2*i}, v{33+16*r+2*i}")
    for r in range(2):
        a(f"buffer_store_dwordx4 v[{8+8*r}:{11+8*r}], v3, s[24:27], s45 offen offset:{2048*r}")
        a(f"buffer_store_dwordx4 v[{12+8*r}:{15+8*r}], v3, s[24:27], s45 offen offset:{2048*r+1024}")
    a("s_lshl_b32 s50, s44, 2")
    a(f"s_add_u32 s50, s50, {WS_G}")
    a("v_mov_b32 v7, 0")
    a("s_mov_b64 exec, 1")
    a("buffer_store_dwordx2 v[82:83], v7, s[24:27], s50 offen")
    a("s_mov_b64 exec, -1")
    a("v_bfe_u32 v6, v2, 2, 2")
    a("v_lshlrev_b32 v7, 4, v5")
    a("v_add_u32 v6, v6, v7")
    a("v_lshlrev_b32 v6, 6, v6")
    a("v_and_b32 v7, 3, v2")
    a("v_lshlrev_b32 v7, 3, v7")
    a("v_add3_u32 v6, v6, v7, s42")
    for i in range(8): a(f"v_mov_b32 v{88+i}, 0")
    stamp(a, 3)
    a("s_waitcnt vmcnt(5)")
    for p in range(4):
        for ab in range(2):
            for db in range(2):
                for t in range(2):
                    d = 32 + 8 * ((2 * p + ab) % 4) + 4 * db + 2 * t
                    a(f"ds_read_b64_tr_b16 v[{d}:{d+1}], v6 offset:{(64*p+8*ab+4*t)*64 + db*32}")
        if p % 2 == 1:
            a("s_waitcnt lgkmcnt(0)")
            a("s_cmp_eq_u32 s41, 0")
            a(f"s_cbranch_scc0 {name}_v{p}")
            for pp in (p - 1, p):
                for ab in range(2):
                    for db in range(2):
                        w = 32 + 8 * ((2 * pp + ab) % 4) + 4 * db; x = 96 + 8 * pp + 4 * ab
                        a(f"v_mfma_f32_16x16x32_bf16 v[{88+4*db}:{91+4*db}], v[{w}:{w+3}], v[{x}:{x+3}], v[{88+4*db}:{91+4*db}]")
            a(f"s_branch {name}_j{p}")
            a.label(f"{name}_v{p}")
            for pp in (p - 1, p):
                for ab in range(2):
                    for db in range(2):
                        w = 32 + 8 * ((2 * pp + ab) % 4) + 4 * db; x = 96 + 8 * pp + 4 * ab
                        a(f"v_mfma_f32_16x16x32_bf16 v[{88+4*db}:{91+4*db}], v[{x}:{x+3}], v[{w}:{w+3}], v[{88+4*db}:{91+4*db}]")
            a.label(f"{name}_j{p}")
    a.nop(8)
    a("s_lshl_b32 s51, s3, 11")
    a("s_add_u32 s51, s51, 65536")
    a("v_add_u32 v7, s51, v3")
    a("ds_write_b128 v7, v[88:91]")
    a("ds_write_b128 v7, v[92:95] offset:1024")
    a("s_waitcnt lgkmcnt(0)")
    a("s_barrier")
    a("s_cmp_ge_u32 s3, 2")
    a(f"s_cbranch_scc1 {name}_end")
    a("s_lshl_b32 s51, s3, 10")
    a("s_add_u32 s51, s51, 65536")
    a("v_add_u32 v7, s51, v3")
    for w in range(4):
        a(f"ds_read_b128 v[{32+4*w}:{35+4*w}], v7 offset:{w*2048}")
    a("v_and_b32 v8, 1, v5")
    a("v_lshlrev_b32 v8, 9, v8")
    a("v_lshrrev_b32 v9, 1, v5")
    a("v_lshlrev_b32 v9, 3, v9")
    a("v_and_b32 v10, 15, v2")
    a("v_lshlrev_b32 v10, 4, v10")
    a("v_add3_u32 v8, v8, v9, v10")
    a("s_lshr_b32 s52, s40, 1")
    a("s_lshl_b32 s52, s52, 12")
    a(f"s_add_u32 s52, s52, {WS_KV}")
    a("s_and_b32 s53, s40, 1")
    a("s_lshl_b32 s54, s3, 10")
    a("s_lshl_b32 s55, s53, 8")
    a("s_add_u32 s54, s54, s55")
    a("s_lshl_b32 s56, s53, 10")
    a("s_lshl_b32 s57, s3, 8")
    a("s_add_u32 s56, s56, s57")
    a("s_add_u32 s56, s56, 2048")
    a("s_cmp_eq_u32 s41, 0")
    a("s_cselect_b32 s54, s54, s56")
    a("s_add_u32 s52, s52, s54")
    a("s_waitcnt lgkmcnt(0)")
    for i in range(4):
        a(f"v_add_f32 v{32+i}, v{32+i}, v{36+i}")
        a(f"v_add_f32 v{40+i}, v{40+i}, v{44+i}")
    for i in range(4):
        a(f"v_add_f32 v{32+i}, v{32+i}, v{40+i}")
    a("v_cvt_pk_bf16_f32 v32, v32, v33")
    a("v_cvt_pk_bf16_f32 v33, v34, v35")
    a("buffer_store_dwordx2 v[32:33], v8, s[24:27], s52 offen")
    diag_end(a)
    a.label(f"{name}_end")
    a("s_endpgm")
    return a.text(), dict(vgpr=128, grid=256, block=256, lds=65536 + 8192)

ACC = 64; SETS = [32, 48]
def gemm_common_ids(a):
    a("v_lshrrev_b32 v1, 6, v0")
    a("v_and_b32 v2, 63, v0")
    a("v_readfirstlane_b32 s3, v1")

def pack_store_frags(a, acc, nblk, vaddr, srd_, s_off, offs):
    for b in range(nblk):
        for hf in range(2):
            r = acc + 16 * b + 8 * hf
            for i in range(4):
                a(f"v_cvt_pk_bf16_f32 v{r+i}, v{r+2*i}, v{r+2*i+1}")
            so, io = offs[b][hf]
            a(f"buffer_store_dwordx4 v[{r}:{r+3}], v{vaddr}, s[{srd_}:{srd_+3}], s{so} offen" + (f" offset:{io}" if io else ""))

def k_qproj(name):
    a = Asm()
    a("s_cmp_ge_u32 s2, 256")
    a(f"s_cbranch_scc1 {name}_end")
    diag_start(a)
    ldptr(a, 4, "wq"); ldptr(a, 6, "x"); ldptr(a, 8, "ws")
    gemm_common_ids(a)
    a("s_and_b32 s40, s2, 7"); a("s_lshr_b32 s41, s2, 3")
    a("s_and_b32 s42, s40, 1"); a("s_lshl_b32 s42, s42, 2"); a("s_and_b32 s43, s41, 3"); a("s_add_u32 s42, s42, s43")
    a("s_lshr_b32 s43, s40, 1"); a("s_lshl_b32 s43, s43, 3"); a("s_lshr_b32 s44, s41, 2"); a("s_add_u32 s43, s43, s44")
    a("s_lshl_b32 s44, s42, 7")
    a("s_lshl_b32 s45, s43, 6")
    a("s_waitcnt lgkmcnt(0)")
    srd(a, 16, 4, D_ * D_ * 2); srd(a, 20, 6, S_ * D_ * 2); srd(a, 24, 8, 4 << 20, WS_Q)
    A = Opnd("tr", 128, 16, D_ * 2, "N"); B = Opnd("kc", 64, 20, D_ * 2); B.region = A.bytes
    slot = A.bytes + B.bytes
    a("s_cmp_ge_u32 s3, 4")
    a(f"s_cbranch_scc1 {name}_ld")
    a("s_and_b32 s46, s3, 1")
    a("s_lshr_b32 s47, s3, 1")
    a("s_lshl_b32 s48, s46, 1")
    a("s_mov_b32 s49, 0")
    ra = Reader(A, 8, slot, True); rb = Reader(B, 16, slot, True)
    ra.setup(a, 2, 48, 47, 4, 60); rb.setup(a, 2, 49, 47, 4, 60)
    for i in range(64): a(f"v_mov_b32 v{ACC+i}, 0")
    stamp(a, 1)
    a("s_barrier")
    stamp(a, 2)
    st = MfmaStream(a, ACC, SETS)
    mfma_phases(a, name, st, [dict(ra=ra, rb=rb, nst=D_ // BK)], True, 50)
    stamp(a, 3)
    ksplit_exchange(a, ACC, 47, 46, 2, 4, 60)
    stamp(a, 4)
    c = LOG2E / math.sqrt(32.0)
    a(f"s_mov_b32 s52, {f32hex(c)}")
    for i in range(32): a(f"v_mul_f32 v{ACC+i}, s52, v{ACC+i}")
    a("s_lshl_b32 s53, s43, 1"); a("s_add_u32 s53, s53, s47"); a("s_lshl_b32 s53, s53, 6")
    a("s_lshl_b32 s54, s42, 3"); a("s_add_u32 s53, s53, s54")
    a("s_lshl_b32 s54, s46, 2"); a("s_add_u32 s53, s53, s54")
    a("s_lshl_b32 s53, s53, 10")
    a("v_lshlrev_b32 v4, 4, v2")
    pack_store_frags(a, ACC, 2, 4, 24, 53, [[(53, 0), (53, 1024)], [(53, 2048), (53, 3072)]])
    diag_end(a)
    a("s_endpgm")
    a.label(f"{name}_ld")
    a("s_sub_u32 s46, s3, 4")
    va = emit_loader_setup(a, A, 44, 46, 2, 8, 4, 60)
    vb = emit_loader_setup(a, B, 45, 46, 2, 16, 4, 60)
    a("s_mov_b32 s52, 0"); a("s_mov_b32 s53, 0")
    a(f"s_mul_i32 s54, s46, {A.bytes//4}"); a(f"s_mul_i32 s55, s46, {B.bytes//4}")
    loader_phases(a, name, [dict(A=(A, va, 52, 54), B=(B, vb, 53, 55), nst=D_ // BK)], slot, 50)
    diag_end(a)
    a.label(f"{name}_end")
    a("s_endpgm")
    return a.text(), dict(vgpr=128, grid=256, block=512, lds=4 * slot)

def gelu_block(a, r0, n, tmp, s_c0, s_c1):
    for i in range(0, n, 2):
        a(f"v_pk_mul_f32 v[{tmp+i}:{tmp+i+1}], v[{r0+i}:{r0+i+1}], v[{r0+i}:{r0+i+1}]")
    for i in range(0, n, 2):
        a(f"v_pk_fma_f32 v[{tmp+i}:{tmp+i+1}], v[{tmp+i}:{tmp+i+1}], s[{s_c1}:{s_c1+1}], v[{s_c0}:{s_c0+1}]")
    for i in range(0, n, 2):
        a(f"v_pk_mul_f32 v[{tmp+i}:{tmp+i+1}], v[{tmp+i}:{tmp+i+1}], v[{r0+i}:{r0+i+1}]")
    for i in range(n): a(f"v_exp_f32 v{tmp+i}, v{tmp+i}")
    for i in range(0, n, 2):
        a(f"v_pk_add_f32 v[{tmp+i}:{tmp+i+1}], v[{tmp+i}:{tmp+i+1}], v[{s_c0+2}:{s_c0+3}]")
    for i in range(n): a(f"v_rcp_f32 v{tmp+i}, v{tmp+i}")
    for i in range(0, n, 2):
        a(f"v_pk_mul_f32 v[{r0+i}:{r0+i+1}], v[{r0+i}:{r0+i+1}], v[{tmp+i}:{tmp+i+1}]")

def k_gemm1(name):
    a = Asm()
    a("s_cmp_ge_u32 s2, 224")
    a(f"s_cbranch_scc1 {name}_end")
    diag_start(a)
    ldptr(a, 4, "w1"); ldptr(a, 6, "b1"); ldptr(a, 8, "ws")
    gemm_common_ids(a)
    a("s_and_b32 s40, s2, 7"); a("s_lshr_b32 s41, s2, 3")
    a("s_and_b32 s42, s40, 1"); a("s_lshl_b32 s42, s42, 2"); a("s_and_b32 s43, s41, 3"); a("s_add_u32 s42, s42, s43")
    a("s_lshr_b32 s43, s40, 1"); a("s_mul_i32 s43, s43, 7"); a("s_lshr_b32 s44, s41, 2"); a("s_add_u32 s43, s43, s44")
    a("s_lshl_b32 s44, s43, 7")
    a("s_lshl_b32 s45, s42, 7")
    a("s_waitcnt lgkmcnt(0)")
    srd(a, 16, 4, S_ * F_ * 2); srd(a, 20, 8, S_ * D_ * 2, WS_H); srd(a, 24, 8, D_ * F_ * 2, WS_U); srd(a, 28, 6, F_ * 2)
    A = Opnd("tr", 128, 16, F_ * 2, "N"); B = Opnd("tr", 128, 20, D_ * 2, "N"); B.region = A.bytes
    slot = A.bytes + B.bytes
    a("s_cmp_ge_u32 s3, 4")
    a(f"s_cbranch_scc1 {name}_ld")
    a("s_and_b32 s46, s3, 1")
    a("s_lshr_b32 s47, s3, 1")
    a("s_lshl_b32 s48, s46, 1"); a("s_lshl_b32 s49, s47, 1")
    a("v_lshrrev_b32 v4, 5, v2"); a("v_lshlrev_b32 v4, 3, v4")
    a("s_lshl_b32 s52, s46, 6"); a("s_add_u32 s52, s52, s44"); a("s_lshl_b32 s52, s52, 1")
    for mb in range(2):
        for q in range(4):
            a(f"buffer_load_dwordx2 v[{32+8*mb+2*q}:{33+8*mb+2*q}], v4, s[28:31], s52 offen offset:{mb*64+q*16}")
    ra = Reader(A, 8, slot, False); rb = Reader(B, 16, slot, False)
    ra.setup(a, 2, 48, None, 4, 60); rb.setup(a, 2, 49, None, 4, 60)
    a("s_waitcnt vmcnt(0)")
    for mb in range(2):
        for i in range(8):
            for nb in range(2):
                c = ACC + 16 * (2 * mb + nb) + 2 * i
                a(f"v_lshlrev_b32 v{c}, 16, v{32+8*mb+i}")
                a(f"v_and_b32 v{c+1}, 0xffff0000, v{32+8*mb+i}")
    stamp(a, 1)
    a("s_barrier")
    stamp(a, 2)
    st = MfmaStream(a, ACC, SETS)
    mfma_phases(a, name, st, [dict(ra=ra, rb=rb, nst=S_ // BK)], False, 50)
    stamp(a, 3)
    c0 = -2.0 * math.sqrt(2.0 / math.pi) * LOG2E
    a(f"v_mov_b32 v4, {f32hex(c0)}"); a(f"v_mov_b32 v5, {f32hex(c0)}"); a("v_mov_b32 v6, 1.0"); a("v_mov_b32 v7, 1.0")
    a(f"s_mov_b32 s54, {f32hex(c0*0.044715)}"); a(f"s_mov_b32 s55, {f32hex(c0*0.044715)}")
    a("s_lshl_b32 s56, s42, 2"); a("s_add_u32 s56, s56, s49"); a("s_mul_i32 s56, s56, 224")
    a("s_lshl_b32 s57, s43, 3"); a("s_add_u32 s56, s56, s57")
    a("s_lshl_b32 s57, s46, 2"); a("s_add_u32 s56, s56, s57")
    a("s_lshl_b32 s56, s56, 10")
    a(f"s_add_u32 s57, s56, {224*1024}")
    a("v_lshlrev_b32 v3, 4, v2")
    a.nop(4)
    for b in range(4):
        mb, nb = b // 2, b % 2
        gelu_block(a, ACC + 16 * b, 16, 32, 4, 54)
        so = 56 + nb
        pack_store_frags(a, ACC + 16 * b, 1, 3, 24, None, [[(so, mb * 2048), (so, mb * 2048 + 1024)]])
    diag_end(a)
    a("s_endpgm")
    a.label(f"{name}_ld")
    a("s_sub_u32 s46, s3, 4")
    va = emit_loader_setup(a, A, 44, 46, 2, 8, 4, 60)
    vb = emit_loader_setup(a, B, 45, 46, 2, 16, 4, 60)
    a("s_mov_b32 s52, 0"); a("s_mov_b32 s53, 0")
    a(f"s_mul_i32 s54, s46, {A.bytes//4}"); a(f"s_mul_i32 s55, s46, {B.bytes//4}")
    loader_phases(a, name, [dict(A=(A, va, 52, 54), B=(B, vb, 53, 55), nst=S_ // BK)], slot, 50)
    diag_end(a)
    a.label(f"{name}_end")
    a("s_endpgm")
    return a.text(), dict(vgpr=128, grid=224, block=512, lds=4 * slot)

def k_gemm2(name):
    a = Asm()
    a("s_cmp_ge_u32 s2, 256")
    a(f"s_cbranch_scc1 {name}_end")
    diag_start(a)
    ldptr(a, 4, "w2"); ldptr(a, 6, "b2"); ldptr(a, 8, "ws"); ldptr(a, 10, "wo"); ldptr(a, 12, "out")
    gemm_common_ids(a)
    a("s_and_b32 s40, s2, 7"); a("s_lshr_b32 s41, s2, 3")
    a("s_and_b32 s42, s40, 1"); a("s_lshl_b32 s42, s42, 2"); a("s_and_b32 s43, s41, 3"); a("s_add_u32 s42, s42, s43")
    a("s_lshr_b32 s43, s40, 1"); a("s_lshl_b32 s43, s43, 3"); a("s_lshr_b32 s44, s41, 2"); a("s_add_u32 s43, s43, s44")
    a("s_lshl_b32 s44, s42, 7")
    a("s_lshl_b32 s45, s43, 6")
    a("s_lshl_b32 s70, s42, 2")
    a("s_lshl_b32 s71, s43, 1")
    a("s_waitcnt lgkmcnt(0)")
    srd(a, 16, 8, D_ * F_ * 2, WS_U); srd(a, 20, 4, F_ * S_ * 2); srd(a, 24, 10, D_ * D_ * 2); srd(a, 28, 8, 4 << 20, WS_O)
    srd(a, 32, 12, S_ * D_ * 2); srd(a, 36, 6, S_ * 2); srd(a, 64, 8, S_ * 4, WS_G)
    A1 = Opnd("frag", 128, 16, F_ // 16); B1 = Opnd("tr", 64, 20, S_ * 2, "P"); B1.region = A1.bytes
    A2 = Opnd("tr", 128, 24, D_ * 2, "P"); B2 = Opnd("frag", 64, 28, D_ // 16); B2.region = A2.bytes
    slot = A1.bytes + B1.bytes
    a("s_cmp_ge_u32 s3, 4")
    a(f"s_cbranch_scc1 {name}_ld")
    a("s_and_b32 s46, s3, 1")
    a("s_lshr_b32 s47, s3, 1")
    a("s_lshl_b32 s48, s46, 1"); a("s_mov_b32 s49, 0")
    a("v_and_b32 v4, 31, v2"); a("v_add_u32 v4, s45, v4")
    a("v_lshlrev_b32 v5, 1, v4"); a("v_lshlrev_b32 v6, 2, v4")
    a("buffer_load_ushort v28, v5, s[36:39], 0 offen")
    a("buffer_load_ushort v29, v5, s[36:39], 0 offen offset:64")
    a("buffer_load_dword v30, v6, s[64:67], 0 offen")
    a("buffer_load_dword v31, v6, s[64:67], 0 offen offset:128")
    ra1 = Reader(A1, 8, slot, True); rb1 = Reader(B1, 10, slot, True)
    ra2 = Reader(A2, 14, slot, True); rb2 = Reader(B2, 18, slot, True)
    for r, b0 in ((ra1, 48), (rb1, 49), (ra2, 48), (rb2, 49)): r.setup(a, 2, b0, 47, 4, 60)
    a("s_waitcnt vmcnt(0)")
    a("v_lshlrev_b32 v28, 16, v28"); a("v_lshlrev_b32 v29, 16, v29")
    a("v_sub_f32 v30, 1.0, v30"); a("v_sub_f32 v31, 1.0, v31")
    a("s_cmp_eq_u32 s47, 0")
    a("s_cselect_b32 s52, 1.0, 0")
    a("v_mul_f32 v28, s52, v28"); a("v_mul_f32 v29, s52, v29")
    for b in range(4):
        for i in range(16): a(f"v_mov_b32 v{ACC+16*b+i}, v{28+b%2}")
    stamp(a, 1)
    a("s_barrier")
    stamp(a, 2)
    st = MfmaStream(a, ACC, SETS)
    def mid():
        a.nop(12)
        for b in range(4):
            for i in range(16): a(f"v_mul_f32 v{ACC+16*b+i}, v{30+b%2}, v{ACC+16*b+i}")
        a.nop(2)
    mfma_phases(a, name, st, [dict(ra=ra1, rb=rb1, nst=F_ // BK, after=mid), dict(ra=ra2, rb=rb2, nst=D_ // BK)], True, 50)
    stamp(a, 3)
    ksplit_exchange(a, ACC, 47, 46, 2, 4, 60)
    stamp(a, 4)
    for mb in range(2):
        for i in range(8):
            r = ACC + 16 * mb
            a(f"v_cvt_pk_bf16_f32 v{r+i}, v{r+2*i}, v{r+2*i+1}")
    a("v_and_b32 v4, 31, v2"); a("v_lshlrev_b32 v4, 11, v4")
    a("v_lshrrev_b32 v5, 5, v2"); a("v_lshlrev_b32 v5, 4, v5")
    a("v_add_u32 v4, v4, v5")
    a("s_lshl_b32 s52, s47, 5"); a("s_add_u32 s52, s52, s45"); a("s_lshl_b32 s52, s52, 11")
    a("s_lshl_b32 s53, s46, 6"); a("s_add_u32 s53, s53, s44"); a("s_lshl_b32 s53, s53, 1")
    a("s_add_u32 s52, s52, s53")
    for mb in range(2):
        for qp in range(2):
            r = ACC + 16 * mb + 4 * qp
            a(f"v_permlane32_swap_b32 v{r}, v{r+2}")
            a(f"v_permlane32_swap_b32 v{r+1}, v{r+3}")
            a(f"buffer_store_dwordx4 v[{r}:{r+3}], v4, s[32:35], s52 offen offset:{mb*64+qp*32}")
    diag_end(a)
    a("s_endpgm")
    a.label(f"{name}_ld")
    a("s_sub_u32 s46, s3, 4")
    va1 = emit_loader_setup(a, A1, 70, 46, 2, 8, 4, 60)
    vb1 = emit_loader_setup(a, B1, 45, 46, 2, 12, 4, 60)
    va2 = emit_loader_setup(a, A2, 44, 46, 2, 16, 4, 60)
    vb2 = emit_loader_setup(a, B2, 71, 46, 2, 20, 4, 60)
    for s in (52, 53, 56, 57): a(f"s_mov_b32 s{s}, 0")
    a(f"s_mul_i32 s54, s46, {A1.bytes//4}"); a(f"s_mul_i32 s55, s46, {B1.bytes//4}")
    loader_phases(a, name, [dict(A=(A1, va1, 52, 54), B=(B1, vb1, 53, 55), nst=F_ // BK),
                            dict(A=(A2, va2, 56, 54), B=(B2, vb2, 57, 55), nst=D_ // BK)], slot, 50)
    diag_end(a)
    a.label(f"{name}_end")
    a("s_endpgm")
    return a.text(), dict(vgpr=128, grid=256, block=512, lds=4 * slot)

def k_attn(name):
    a = Asm()
    Q, NEGM, SS, PP, O, L, SA, IDX = 8, 16, [32, 48], [64, 72], 80, 96, 100, 104
    K1, K2, V1, V2 = 108, 112, 116, 120
    VC, VN, VG = 4, 5, 6
    CH = 32768
    a("s_cmp_ge_u32 s2, 256")
    a(f"s_cbranch_scc1 {name}_end")
    diag_start(a)
    ldptr(a, 8, "ws")
    gemm_common_ids(a)
    a("v_lshlrev_b32 v3, 4, v2")
    a("s_lshl_b32 s40, s2, 4"); a("s_lshl_b32 s41, s3, 1"); a("s_add_u32 s40, s40, s41"); a("s_lshl_b32 s40, s40, 10")
    a("s_lshr_b32 s42, s2, 2"); a("s_lshl_b32 s42, s42, 7")
    a("s_lshl_b32 s43, s3, 12")
    a("s_waitcnt lgkmcnt(0)")
    srd(a, 16, 8, 256 << 10, WS_KV); srd(a, 20, 8, 4 << 20, WS_Q); srd(a, 24, 8, 4 << 20, WS_O); srd(a, 28, 8, S_ * 4, WS_G)
    a(f"buffer_load_dwordx4 v[{Q}:{Q+3}], v3, s[20:23], s40 offen")
    a(f"buffer_load_dwordx4 v[{Q+4}:{Q+7}], v3, s[20:23], s40 offen offset:1024")
    a("v_and_b32 v7, 31, v2"); a("v_lshlrev_b32 v7, 2, v7")
    a(f"buffer_load_dword v{VG}, v7, s[28:31], s42 offen")
    def dma(s_goff, s_lds):
        a(f"s_mov_b32 m0, s{s_lds}")
        a("s_nop 0")
        for j in range(4):
            a(f"buffer_load_dwordx4 v3, s[16:19], s{s_goff} offen" + (f" offset:{j*1024}" if j else "") + " lds")
    a("s_mov_b32 s44, s43")
    a("s_mov_b32 s45, s43")
    for c in range(3):
        dma(44, 45)
        a(f"s_add_u32 s44, s44, {CH}"); a(f"s_add_u32 s45, s45, {CH}")
    a("v_bfe_u32 v7, v2, 2, 1")
    a("v_and_b32 v105, 3, v2")
    a("v_mov_b32 v106, 0x3f803f80")
    a("v_cmp_gt_u32 vcc, 2, v105")
    a.nop(2)
    a("v_cndmask_b32 v106, 0, v106, vcc")
    a("v_cmp_eq_u32 vcc, 0, v7")
    a.nop(2)
    a(f"v_cndmask_b32 v{SA}, 0, v106, vcc"); a(f"v_cndmask_b32 v{SA+1}, 0, v106, vcc")
    a(f"v_sub_u32 v{SA+2}, v106, v{SA}")
    a(f"v_sub_u32 v{SA+3}, v106, v{SA}")
    a(f"v_mov_b32 v{IDX}, 0x44444444"); a("v_mov_b32 v106, 0xeeeeeeee")
    a("v_cmp_eq_u32 vcc, 0, v105")
    a.nop(2)
    a(f"v_cndmask_b32 v{IDX}, v106, v{IDX}, vcc")
    def zero_state():
        for i in range(16): a(f"v_mov_b32 v{O+i}, 0")
        for i in range(4): a(f"v_mov_b32 v{L+i}, 0")
    zero_state()
    for i in range(8): a(f"v_mov_b32 v{PP[1]+i}, 0")
    for i in range(4): a(f"v_mov_b32 v{V2+i}, 0")
    a(f"v_mov_b32 v{VC}, v3"); a(f"v_add_u32 v{VN}, {CH}, v3")
    stamp(a, 1)
    a("s_waitcnt vmcnt(8)")
    a("s_barrier")
    stamp(a, 2)
    def rd(dst, base, off): a(f"ds_read_b128 v[{dst}:{dst+3}], v{base} offset:{off}")
    def qk(s, first, c):
        k = K1 if first else K2; q = Q if first else Q + 4
        cs = c if isinstance(c, str) else f"v[{c}:{c+15}]"
        a(f"v_mfma_f32_32x32x16_bf16 v[{s}:{s+15}], v[{k}:{k+3}], v[{q}:{q+3}], {cs}")
    def pv(p, first):
        v = V1 if first else V2; b = p if first else p + 4
        a(f"v_mfma_f32_32x32x16_bf16 v[{O}:{O+15}], v[{v}:{v+3}], v[{b}:{b+3}], v[{O}:{O+15}]")
    def sm(p): a(f"v_smfmac_f32_16x16x64_bf16 v[{L}:{L+3}], v[{SA}:{SA+3}], v[{p}:{p+7}], v{IDX}")
    def rowmax_to_negm(src, nreg_first):
        pass
    def set_negm(m):
        a(f"v_mov_b32 v7, v{m}")
        a.nop(2)
        a(f"v_permlane32_swap_b32 v{m}, v7")
        a(f"v_max_f32 v{m}, v{m}, v7")
        for i in range(16): a(f"v_sub_f32 v{NEGM+i}, 0, v{m}")
        a.nop(2)
    rd(K1, VC, 0); rd(K2, VC, 1024)
    a("s_waitcnt lgkmcnt(0)")
    qk(SS[0], True, "0"); qk(SS[0], False, SS[0])
    a.nop(12)
    s0 = SS[0]
    a(f"v_max3_f32 v105, v{s0}, v{s0+1}, v{s0+2}")
    for i in range(3, 15, 2): a(f"v_max3_f32 v105, v105, v{s0+i}, v{s0+i+1}")
    a(f"v_max_f32 v105, v105, v{s0+15}")
    set_negm(105)
    qk(SS[0], True, NEGM); qk(SS[0], False, SS[0])
    rd(K1, VC, 4096); rd(K2, VC, 4096 + 1024); rd(V1, VC, 2048)
    a("s_mov_b32 s46, 8")
    a("s_waitcnt lgkmcnt(0)")
    a.nop(10)
    stamp(a, 3)
    a("s_waitcnt lgkmcnt(0)")
    a.raw(".p2align 6")
    a.label(f"{name}_loop")
    for i in range(8):
        s = SS[i % 2]; sn = SS[(i + 1) % 2]; p = PP[i % 2]; pp = PP[(i + 1) % 2]
        def e(j): a(f"v_exp_f32 v{s+j}, v{s+j}")
        def c(j): a(f"v_cvt_pk_bf16_f32 v{p+j}, v{s+2*j}, v{s+2*j+1}")
        def at(t): return (VC, t * 4096) if t < 8 else (VN, (t - 8) * 4096)
        if i == 6:
            a("s_waitcnt vmcnt(4)")
            a("s_barrier")
        a("s_waitcnt lgkmcnt(1)")
        qk(sn, True, NEGM)
        b, o = at(i + 2); rd(K1, b, o)
        if i == 6:
            a("s_and_b32 s45, s45, 0x1ffff")
            dma(44, 45)
            a(f"s_add_u32 s44, s44, {CH}"); a(f"s_add_u32 s45, s45, {CH}")
        e(0); e(1); e(2); e(3)
        qk(sn, False, sn)
        rd(K2, b, o + 1024)
        e(4); e(5); e(6); c(0); c(1)
        pv(pp, False)
        rd(V2, VC, i * 4096 + 3072)
        e(7); c(2); c(3); e(8); e(9)
        a("s_waitcnt lgkmcnt(3)")
        pv(p, True)
        b, o = at(i + 1); rd(V1, b, o + 2048)
        e(10); e(11); e(12); c(4); c(5)
        sm(pp)
        if i == 7:
            a(f"v_mov_b32 v{VC}, v{VN}")
            a(f"v_add_u32 v{VN}, {CH}, v{VN}")
            a(f"v_and_b32 v{VN}, 0x1ffff, v{VN}")
            a("s_sub_u32 s46, s46, 1")
            a("s_cmp_lg_u32 s46, 0")
        e(13); e(14); e(15); c(6); c(7)
    a(f"s_cbranch_scc1 {name}_loop")
    stamp(a, 4)
    a("s_waitcnt lgkmcnt(0)")
    a("s_nop 0")
    pv(PP[1], False); sm(PP[1])
    a.nop(12)
    a(f"v_add_f32 v7, v{L}, v{L+1}")
    a(f"v_max3_f32 v105, |v{O}|, |v{O+1}|, |v{O+2}|")
    for i in range(3, 15, 2): a(f"v_max3_f32 v105, v105, |v{O+i}|, |v{O+i+1}|")
    a(f"v_max_f32 v105, v105, |v{O+15}|")
    a(f"v_add_f32 v106, v{O}, v{O+1}")
    for i in range(2, 16): a(f"v_add_f32 v106, v106, v{O+i}")
    a(f"s_mov_b32 s48, {f32hex(2.0**64)}")
    a(f"s_mov_b32 s49, {f32hex(2.0**120)}")
    a("v_cmp_gt_f32 s[50:51], s48, v7")
    a("v_cmp_gt_f32 s[52:53], s49, v105")
    a("v_cmp_o_f32 vcc, v106, v106")
    a.nop(2)
    a("s_and_b64 s[50:51], s[50:51], s[52:53]")
    a("s_and_b64 s[50:51], s[50:51], vcc")
    a("s_cmp_eq_u64 s[50:51], -1")
    a(f"s_cbranch_scc0 {name}_slow")
    a.label(f"{name}_fin")
    a("v_rcp_f32 v7, v7")
    a("s_nop 0")
    a(f"v_mul_f32 v7, v7, v{VG}")
    for i in range(16): a(f"v_mul_f32 v{O+i}, v{O+i}, v7")
    pack_store_frags(a, O, 1, 3, 24, None, [[(40, 0), (40, 1024)]])
    diag_end(a)
    a.label(f"{name}_end")
    a("s_endpgm")
    a.label(f"{name}_slow")
    a("s_waitcnt vmcnt(0)")
    a("v_mov_b32 v105, 0xff800000")
    a("s_mov_b32 s46, 0")
    a.label(f"{name}_s1")
    a(f"buffer_load_dwordx4 v[{K1}:{K1+3}], v3, s[16:19], s46 offen")
    a(f"buffer_load_dwordx4 v[{K2}:{K2+3}], v3, s[16:19], s46 offen offset:1024")
    a("s_waitcnt vmcnt(0)")
    qk(s0, True, "0"); qk(s0, False, s0)
    a.nop(12)
    for i in range(0, 16, 2): a(f"v_max3_f32 v105, v105, v{s0+i}, v{s0+i+1}")
    a("s_add_u32 s46, s46, 4096")
    a(f"s_cmp_lt_u32 s46, {256<<10}")
    a(f"s_cbranch_scc1 {name}_s1")
    set_negm(105)
    zero_state()
    a("s_mov_b32 s46, 0")
    a.label(f"{name}_s2")
    for r, off in ((K1, 0), (K2, 1024), (V1, 2048), (V2, 3072)):
        a(f"buffer_load_dwordx4 v[{r}:{r+3}], v3, s[16:19], s46 offen" + (f" offset:{off}" if off else ""))
    a("s_waitcnt vmcnt(0)")
    qk(s0, True, NEGM); qk(s0, False, s0)
    a.nop(12)
    for j in range(16): a(f"v_exp_f32 v{s0+j}, v{s0+j}")
    a("s_nop 0")
    for j in range(8): a(f"v_cvt_pk_bf16_f32 v{PP[0]+j}, v{s0+2*j}, v{s0+2*j+1}")
    a.nop(2)
    pv(PP[0], True); pv(PP[0], False); sm(PP[0])
    a("s_add_u32 s46, s46, 4096")
    a(f"s_cmp_lt_u32 s46, {256<<10}")
    a.nop(8)
    a(f"s_cbranch_scc1 {name}_s2")
    a.nop(12)
    a(f"v_add_f32 v7, v{L}, v{L+1}")
    a(f"s_branch {name}_fin")
    return a.text(), dict(vgpr=128, grid=256, block=512, lds=4 * CH)
```

```python
import sys
sys.path.insert(0, "gen")
from build import *
def k_empty(name):
    a = Asm(); a("s_endpgm")
    return a.text(), dict(vgpr=8, grid=256, block=256, lds=0)
base = [("prep_kernel", K.k_prep), ("qproj_kernel", K.k_qproj), ("attn_kernel", K.k_attn), ("gemm1_kernel", K.k_gemm1), ("gemm2_kernel", K.k_gemm2)]
build(base, "e1_base.s")
build([("e0_kernel", k_empty)] + base, "e1_front.s")
build(base + [("e0_kernel", k_empty)], "e1_back.s")
build([("e0_kernel", k_empty), ("e1_kernel", k_empty), ("e2_kernel", k_empty)] + base, "e1_front3.s")
build([base[1], base[0]] + base[2:], "e1_swap.s")
```
